```python
import torch

def _softmax(x, axis=-1):
    return torch.softmax(x, dim=axis)

def _gelu(x):
    return torch.nn.functional.gelu(x, approximate='tanh')

def _silu(x):
    return torch.nn.functional.silu(x)

def _sigmoid(x):
    return torch.sigmoid(x)

def _layernorm(x, axis=-1, eps=1e-05):
    m = x.mean(dim=axis, keepdim=True)
    v = x.var(dim=axis, keepdim=True, unbiased=False)
    return (x - m) / torch.sqrt(v + eps)

def _scatter_add(tgt, idx, src, axis=0):
    return tgt.clone().index_add_(axis, idx, src)

def _segment_sum(src, seg, n):
    out = torch.zeros((n,) + src.shape[1:], dtype=src.dtype)
    return out.index_add_(0, seg, src)

def _pad(x, pw):
    flat = tuple((v for pair in reversed(pw) for v in pair))
    return torch.nn.functional.pad(x, flat)
kernel_name = 'adaLN_cond__ssm_conv_s4__dense_activation_silu__prompt'

def setup_inputs():

    _w = lambda a: (lambda t: t.to(torch.bfloat16) if t.is_floating_point() else t)(torch.as_tensor(a))

    def _A_setup():
        B, L, D, N = (1, 2048, 576, 128)
        A_re = -(lambda _x: torch.exp(torch.as_tensor(_x)))((lambda *s: torch.randn(*s, dtype=torch.bfloat16) * 3.2)(D, N))
        A_im = torch.pi * (lambda *s: torch.randn(*s, dtype=torch.bfloat16) * 0.05)(D, N)
        B_re = (lambda *s: torch.randn(*s, dtype=torch.bfloat16) * 0.1)(D, N)
        B_im = (lambda *s: torch.randn(*s, dtype=torch.bfloat16) * 0.1)(D, N)
        C_re = (lambda *s: torch.randn(*s, dtype=torch.bfloat16) * 0.1)(D, N)
        C_im = (lambda *s: torch.randn(*s, dtype=torch.bfloat16) * 0.1)(D, N)
        log_dt = (lambda *s: torch.randn(*s, dtype=torch.bfloat16) * 0.05)(D) * 0.5 - 4.0
        Dskip = (lambda *s: torch.randn(*s, dtype=torch.bfloat16) * 0.05)(D)
        return {'u': _w((lambda *s: torch.randn(*s, dtype=torch.bfloat16) * 0.05)(B, L, D)), 'A_re': _w(A_re), 'A_im': _w(A_im), 'B_re': _w(B_re), 'B_im': _w(B_im), 'C_re': _w(C_re), 'C_im': _w(C_im), 'log_dt': _w(log_dt), 'Dskip': _w(Dskip)}
    _A_in = _A_setup()

    def _B_setup():
        B, S, D, F = (1, 2048, 576, 4608)
        return {'x': _w((lambda *s: torch.randn(*s, dtype=torch.bfloat16) * 0.05)(B, S, D)), 'w1': _w((lambda *s: torch.randn(*s, dtype=torch.bfloat16) * 3.2)(D, F) * D ** (-0.5)), 'w2': _w((lambda *s: torch.randn(*s, dtype=torch.bfloat16) * 0.4)(F, D) * F ** (-0.5))}
    _B_in = _B_setup()
    return {'A_u': _A_in['u'], 'A_A_re': _A_in['A_re'], 'A_A_im': _A_in['A_im'], 'A_B_re': _A_in['B_re'], 'A_B_im': _A_in['B_im'], 'A_C_re': _A_in['C_re'], 'A_C_im': _A_in['C_im'], 'A_log_dt': _A_in['log_dt'], 'A_Dskip': _A_in['Dskip'], 'B_x': _B_in['x'], 'B_w1': _B_in['w1'], 'B_w2': _B_in['w2'], 'c': _w((lambda *s: torch.randn(*s, dtype=torch.bfloat16) * 0.2)(1, 576) * 8.0), 'w_mod': _w((lambda *s: torch.randn(*s, dtype=torch.bfloat16) * 0.2)(576, 6 * 576) * 576 ** (-0.5) * 8.0)}

def reference(A_u, A_A_re, A_A_im, A_B_re, A_B_im, A_C_re, A_C_im, A_log_dt, A_Dskip, B_x, B_w1, B_w2, c, w_mod):

    def _A_ref(u, A_re, A_im, B_re, B_im, C_re, C_im, log_dt, Dskip):
        Bsz, L, D = u.shape
        dt = torch.exp(log_dt)[:, None]
        A = A_re + 1j * A_im
        Bc = B_re + 1j * B_im
        Cc = C_re + 1j * C_im
        logdA = dt * A
        dB = dt * Bc
        l = (lambda x, dt: x.to(dt))(torch.arange(L), A_re.dtype)
        P = torch.exp(logdA[:, :, None] * l[None, None, :])
        K = torch.einsum('dn,dnl,dn->dl', Cc, P, dB).real
        L2 = 2 * L
        Kp = _pad(K, ((0, 0), (0, L)))
        up = (lambda x, *d: x.permute(*d))(u, 0, 2, 1)
        up = _pad(up, ((0, 0), (0, 0), (0, L)))
        Kf = (lambda x, axes=(-2, -1): torch.fft.rfft2(x.float(), dim=axes))(Kp[:, None, :], axes=(-2, -1))
        Uf = (lambda x, axes=(-2, -1): torch.fft.rfft2(x.float(), dim=axes))(up[:, :, None, :], axes=(-2, -1))
        Yf = Uf * Kf[None, :, :, :]
        y = (lambda x, s, axes=(-2, -1): torch.fft.irfft2(x, s=s, dim=axes).to(torch.bfloat16))(Yf, (1, L2), axes=(-2, -1))[:, :, 0, :L]
        y = (lambda x, *d: x.permute(*d))(y, 0, 2, 1) + u * Dskip[None, None, :]
        return y

    def _B_ref(x, w1, w2):
        h = torch.einsum('bsd,df->bsf', x, w1)
        h = _silu(h)
        out = torch.einsum('bsf,fd->bsd', h, w2)
        return out
    x = A_u
    mod = (_silu(c) @ w_mod).reshape(c.shape[0], 6, 1, -1)
    sa, ca, ga, sb, cb, gb = (mod[:, 0].clone(), mod[:, 1].clone(), mod[:, 2].clone(), mod[:, 3].clone(), mod[:, 4].clone(), mod[:, 5].clone())
    h = _layernorm(x, axis=-1) * (1 + ca) + sa
    x = x + ga * _A_ref(h, A_A_re, A_A_im, A_B_re, A_B_im, A_C_re, A_C_im, A_log_dt, A_Dskip)
    h = _layernorm(x, axis=-1) * (1 + cb) + sb
    x = x + gb * _B_ref(h, B_w1, B_w2)
    return x
```

```python
import sys, math, struct

OUT = "adaLN_cond__ssm_conv_s4__dense_activation_silu__prompt.s"

L = 2048
D = 576
NS = 128
F = 4608

WS_MOD = 0
WS_XT = 16384
WS_XH = WS_XT + D * L * 2
WS_X1T = WS_XH + D * L * 2
WS_X1R = WS_X1T + D * L * 2
WS_K = WS_X1R + D * L * 2
WS_P1 = WS_K + D * L * 4
WS_P2 = WS_P1 + D * F * 2
WS_PART = WS_P2 + D * F * 2
NSPLIT = 8
WS_END = WS_PART + NSPLIT * L * D * 4
assert WS_END < 268435456

KA_X, KA_ARE, KA_AIM, KA_BRE, KA_BIM, KA_CRE, KA_CIM, KA_LDT, KA_DSK = [8 * i for i in range(9)]
KA_W1, KA_W2, KA_C, KA_WMOD, KA_OUT, KA_DBG, KA_WS = 80, 88, 96, 104, 112, 120, 128

LOG2E = 1.4426950408889634
INV2PI = 0.15915494309189535


def f32hex(x):
    return "0x%08x" % struct.unpack("<I", struct.pack("<f", x))[0]


class Asm:
    def __init__(self):
        self.lines = []

    def __call__(self, s):
        self.lines.append("    " + s)

    def label(self, l):
        self.lines.append(l + ":")

    def raw(self, s):
        self.lines.append(s)

    def comment(self, s):
        self.lines.append("    ; " + s)

    def text(self):
        return "\n".join(self.lines) + "\n"


A = Asm()


def kernel_begin(name):
    A.raw(".text")
    A.raw(".globl %s" % name)
    A.raw(".p2align 8")
    A.raw(".type %s,@function" % name)
    A.label(name)


def kernel_desc(name, vgpr, sgpr=96, agpr=0):
    acc_off = ((vgpr + 3) // 4) * 4
    nfv = acc_off + agpr
    return """.section .rodata,"a"
.p2align 6
.amdhsa_kernel %s
  .amdhsa_next_free_vgpr %d
  .amdhsa_next_free_sgpr %d
  .amdhsa_accum_offset %d
  .amdhsa_group_segment_fixed_size 0
  .amdhsa_kernarg_size 136
  .amdhsa_user_sgpr_count 2
  .amdhsa_user_sgpr_kernarg_segment_ptr 1
  .amdhsa_system_sgpr_workgroup_id_x 1
.end_amdhsa_kernel
""" % (name, nfv, sgpr, acc_off)


def vr(base, n):
    return "v[%d:%d]" % (base, base + n - 1)


def ar_(base, n):
    return "a[%d:%d]" % (base, base + n - 1)


def sr(base, n=2):
    return "s[%d:%d]" % (base, base + n - 1)


def nop(n):
    while n > 0:
        k = min(n, 16)
        A("s_nop %d" % (k - 1))
        n -= k


def unpack_lo(dst, src):
    A("v_lshlrev_b32 %s, 16, %s" % (dst, src))


def unpack_hi(dst, src):
    A("v_and_b32 %s, 0xffff0000, %s" % (dst, src))


def round_bf16(dst, src):
    A("v_cvt_pk_bf16_f32 %s, %s, %s" % (dst, src, src))
    A("v_lshlrev_b32 %s, 16, %s" % (dst, dst))


N_KGEN = D
N_PACK = 648
N_LN1 = 32
N_MOD = 54
PREP_WGS = N_KGEN + N_PACK + N_LN1 + N_MOD
PREP_LDS = 20480


def gen_prep():
    kernel_begin("prep_kernel")
    A("s_cmp_ge_u32 s2, %d" % PREP_WGS)
    A("s_cbranch_scc1 prep_end")
    A("s_load_dwordx2 s[18:19], s[0:1], %d" % KA_WS)
    A("v_and_b32 v1, 63, v0")
    A("v_lshrrev_b32 v2, 6, v0")
    A("s_cmp_lt_u32 s2, %d" % N_KGEN)
    A("s_cbranch_scc1 prep_kgen")
    A("s_cmp_lt_u32 s2, %d" % (N_KGEN + N_PACK))
    A("s_cbranch_scc1 prep_pack")
    A("s_cmp_lt_u32 s2, %d" % (N_KGEN + N_PACK + N_LN1))
    A("s_cbranch_scc1 prep_ln1")
    A("s_branch prep_mod")

    A.label("prep_kgen")
    A("s_load_dwordx4 s[4:7], s[0:1], %d" % KA_ARE)
    A("s_load_dwordx4 s[8:11], s[0:1], %d" % KA_BRE)
    A("s_load_dwordx4 s[12:15], s[0:1], %d" % KA_CRE)
    A("s_load_dwordx2 s[16:17], s[0:1], %d" % KA_LDT)
    A("v_and_b32 v3, 15, v1")
    A("v_lshrrev_b32 v4, 4, v1")
    A("v_lshrrev_b32 v5, 1, v4")
    A("v_and_b32 v6, 1, v4")
    A("v_cmp_eq_u32 s[20:21], 1, v6")
    A("s_lshl_b32 s22, s2, 8")
    A("v_lshlrev_b32 v7, 6, v2")
    A("v_lshlrev_b32 v8, 5, v5")
    A("v_add3_u32 v7, v7, v8, s22")
    A("v_cvt_f32_u32 v9, v3")
    A("s_mov_b32 s23, %s" % f32hex(LOG2E))
    A("s_mov_b32 s24, %s" % f32hex(INV2PI))
    A("v_mul_f32 v10, s23, v9")
    A("v_mul_f32 v11, s24, v9")
    A("v_mul_f32 v12, 16.0, v10")
    A("v_mul_f32 v13, 16.0, v11")
    A("s_mov_b32 s25, %s" % f32hex(256.0 * LOG2E))
    A("s_mov_b32 s26, %s" % f32hex(256.0 * INV2PI))
    A("v_mov_b32 v14, s2")
    A("v_lshlrev_b32 v14, 1, v14")
    A("s_waitcnt lgkmcnt(0)")
    PB = 16
    for ai, sp in enumerate([4, 6, 8, 10, 12, 14]):
        A("global_load_dwordx4 %s, v7, %s" % (vr(PB + 8 * ai, 4), sr(sp)))
        A("global_load_dwordx4 %s, v7, %s offset:16" % (vr(PB + 8 * ai + 4, 4), sr(sp)))
    A("global_load_ushort v15, v14, s[16:17]")
    for r in range(16):
        A("v_mov_b32 v%d, 0" % (128 + r))
    A("s_waitcnt vmcnt(0)")
    A("v_lshlrev_b32 v15, 16, v15")
    A("v_mul_f32 v15, s23, v15")
    A("v_exp_f32 v15, v15")
    A("s_nop 0")
    round_bf16("v15", "v15")

    T = {}
    nxt = [64]

    def t(name):
        if name not in T:
            T[name] = nxt[0]
            nxt[0] += 1
            assert nxt[0] <= 128, "kgen temps overflow"
        return "v%d" % T[name]

    def cexp(outr, outi, ar, ai, cl, cp):
        A("v_mul_f32 %s, %s, %s" % (t("e_t"), cl, ar))
        A("v_mul_f32 %s, %s, %s" % (t("e_r"), cp, ai))
        A("v_exp_f32 %s, %s" % (t("e_m"), t("e_t")))
        A("v_fract_f32 %s, %s" % (t("e_r"), t("e_r")))
        A("v_cos_f32 %s, %s" % (t("e_c"), t("e_r")))
        A("v_sin_f32 %s, %s" % (t("e_s"), t("e_r")))
        A("s_nop 0")
        A("v_mul_f32 %s, %s, %s" % (outr, t("e_m"), t("e_c")))
        A("v_mul_f32 %s, %s, %s" % (outi, t("e_m"), t("e_s")))

    def cmul(outr, outi, ar, ai, br, bi):
        A("v_mul_f32 %s, %s, %s" % (outr, ar, br))
        A("v_mul_f32 %s, %s, %s" % (outi, ar, bi))
        A("v_fma_f32 %s, -%s, %s, %s" % (outr, ai, bi, outr))
        A("v_fma_f32 %s, %s, %s, %s" % (outi, ai, br, outi))

    def csq(outr, outi, ar, ai):
        A("v_mul_f32 %s, %s, %s" % (outr, ar, ar))
        A("v_mul_f32 %s, %s, %s" % (outi, ar, ai))
        A("v_fma_f32 %s, -%s, %s, %s" % (outr, ai, ai, outr))
        A("v_add_f32 %s, %s, %s" % (outi, outi, outi))

    for q in range(16):
        reg = q // 2
        half = q % 2

        def ext(dst, arr):
            src = "v%d" % (PB + 8 * arr + reg)
            if half == 0:
                unpack_lo(dst, src)
            else:
                unpack_hi(dst, src)
        A.comment("kgen q=%d" % q)
        ext(t("are"), 0); ext(t("aim"), 1); ext(t("bre"), 2); ext(t("bim"), 3); ext(t("cre"), 4); ext(t("cim"), 5)
        A("v_mul_f32 %s, v15, %s" % (t("ar"), t("are")))
        A("v_mul_f32 %s, v15, %s" % (t("ai"), t("aim")))
        A("v_mul_f32 %s, v15, %s" % (t("dbr"), t("bre")))
        A("v_mul_f32 %s, v15, %s" % (t("dbi"), t("bim")))
        cmul(t("cbr"), t("cbi"), t("cre"), t("cim"), t("dbr"), t("dbi"))
        cexp(t("xr"), t("xi"), t("ar"), t("ai"), "v12", "v13")
        cexp(t("e0r"), t("e0i"), t("ar"), t("ai"), "v10", "v11")
        cexp(t("f1r"), t("f1i"), t("ar"), t("ai"), "s25", "s26")
        cmul(t("g0r"), t("g0i"), t("cbr"), t("cbi"), t("xr"), t("xi"))
        csq(t("x2r"), t("x2i"), t("xr"), t("xi"))
        csq(t("x4r"), t("x4i"), t("x2r"), t("x2i"))
        csq(t("x8r"), t("x8i"), t("x4r"), t("x4i"))
        csq(t("f2r"), t("f2i"), t("f1r"), t("f1i"))
        csq(t("f4r"), t("f4i"), t("f2r"), t("f2i"))
        cmul(t("u1r"), t("u1i"), t("cbr"), t("cbi"), t("f1r"), t("f1i"))
        cmul(t("g1r"), t("g1i"), t("u1r"), t("u1i"), t("x2r"), t("x2i"))
        cmul(t("u1r"), t("u1i"), t("cbr"), t("cbi"), t("f2r"), t("f2i"))
        cmul(t("g2r"), t("g2i"), t("u1r"), t("u1i"), t("x4r"), t("x4i"))
        cmul(t("u1r"), t("u1i"), t("cbr"), t("cbi"), t("f4r"), t("f4i"))
        cmul(t("g3r"), t("g3i"), t("u1r"), t("u1i"), t("x8r"), t("x8i"))
        csq(t("e1r"), t("e1i"), t("e0r"), t("e0i"))
        csq(t("e2r"), t("e2i"), t("e1r"), t("e1i"))
        csq(t("e3r"), t("e3i"), t("e2r"), t("e2i"))
        for s in range(4):
            A("v_cndmask_b32_e64 %s, %s, -%s, s[20:21]" % (t("a%d" % s), t("g%dr" % s), t("g%di" % s)))
            A("v_cndmask_b32_e64 %s, %s, %s, s[20:21]" % (t("b%d" % s), t("e%dr" % s), t("e%di" % s)))
        A("s_nop 1")
        for s in range(4):
            A("v_mfma_f32_16x16x4_f32 %s, %s, %s, %s" % (vr(128 + 4 * s, 4), t("a%d" % s), t("b%d" % s), vr(128 + 4 * s, 4)))
    nop(16)
    A("v_lshlrev_b32 v64, 12, v2")
    A("v_lshlrev_b32 v65, 8, v4")
    A("v_lshlrev_b32 v66, 2, v3")
    A("v_add3_u32 v64, v64, v65, v66")
    for s in range(4):
        for r in range(4):
            A("ds_write_b32 v64, v%d offset:%d" % (128 + 4 * s + r, s * 1024 + r * 64))
    A("s_waitcnt lgkmcnt(0)")
    A("s_barrier")
    A("v_lshlrev_b32 v64, 3, v0")
    for e in range(8):
        A("v_add_u32 v65, %d, v64" % e)
        A("v_cvt_f32_u32 v65, v65")
        round_bf16("v65", "v65")
        A("v_cvt_u32_f32 v65, v65")
        A("v_subrev_u32 v66, 0x100, v65")
        A("v_lshrrev_b32 v66, 1, v66")
        A("v_add_u32 v66, 0x100, v66")
        A("v_subrev_u32 v67, 0x200, v65")
        A("v_lshrrev_b32 v67, 2, v67")
        A("v_add_u32 v67, 0x200, v67")
        A("v_subrev_u32 v68, 0x400, v65")
        A("v_lshrrev_b32 v68, 3, v68")
        A("v_add_u32 v68, 0x300, v68")
        A("v_cmp_le_u32 vcc, 0x100, v65")
        A("s_nop 1")
        A("v_cndmask_b32 v69, v65, v66, vcc")
        A("v_cmp_le_u32 vcc, 0x200, v65")
        A("s_nop 1")
        A("v_cndmask_b32 v69, v69, v67, vcc")
        A("v_cmp_le_u32 vcc, 0x400, v65")
        A("s_nop 1")
        A("v_cndmask_b32 v69, v69, v68, vcc")
        A("v_lshlrev_b32 v69, 2, v69")
        for w in range(4):
            A("ds_read_b32 v%d, v69 offset:%d" % (70 + w, w * 4096))
        A("s_waitcnt lgkmcnt(0)")
        A("v_add_f32 v70, v70, v71")
        A("v_add_f32 v72, v72, v73")
        A("v_add_f32 v%d, v70, v72" % (80 + e))
    A("s_lshl_b32 s22, s2, 13")
    A("s_add_u32 s22, s22, %d" % WS_K)
    A("v_lshlrev_b32 v64, 5, v0")
    A("v_add_u32 v64, s22, v64")
    A("global_store_dwordx4 v64, v[80:83], s[18:19]")
    A("global_store_dwordx4 v64, v[84:87], s[18:19] offset:16")
    A("s_branch prep_end")

    A.label("prep_pack")
    A("s_load_dwordx4 s[4:7], s[0:1], %d" % KA_W1)
    A("v_readfirstlane_b32 s20, v2")
    A("s_waitcnt lgkmcnt(0)")
    A("s_sub_u32 s21, s2, %d" % N_KGEN)
    A("s_lshl_b32 s21, s21, 2")
    A("s_add_u32 s21, s21, s20")
    A("s_cmp_lt_u32 s21, 1296")
    A("s_cbranch_scc0 prep_pack_w2")
    A("s_mul_hi_u32 s22, s21, %d" % ((2**32 + 71) // 72))
    A("s_mul_i32 s23, s22, 72")
    A("s_sub_u32 s23, s21, s23")
    A("s_mul_i32 s24, s22, %d" % (32 * 9216))
    A("s_lshl_b32 s25, s23, 7")
    A("s_add_u32 s24, s24, s25")
    A("s_mov_b32 s26, 9216")
    A("s_mul_i32 s27, s23, %d" % (4 * 18))
    A("s_add_u32 s27, s27, s22")
    A("s_lshl_b32 s27, s27, 10")
    A("s_add_u32 s27, s27, %d" % WS_P1)
    A("s_mov_b32 s28, %d" % (18 * 1024))
    A("s_mov_b64 s[30:31], s[4:5]")
    A("s_branch prep_pack_go")
    A.label("prep_pack_w2")
    A("s_sub_u32 s21, s21, 1296")
    A("s_mul_hi_u32 s22, s21, %d" % ((2**32 + 8) // 9))
    A("s_mul_i32 s23, s22, 9")
    A("s_sub_u32 s23, s21, s23")
    A("s_mul_i32 s24, s22, %d" % (32 * 1152))
    A("s_lshl_b32 s25, s23, 7")
    A("s_add_u32 s24, s24, s25")
    A("s_mov_b32 s26, 1152")
    A("s_mul_i32 s27, s23, %d" % (4 * 144))
    A("s_add_u32 s27, s27, s22")
    A("s_lshl_b32 s27, s27, 10")
    A("s_add_u32 s27, s27, %d" % WS_P2)
    A("s_mov_b32 s28, %d" % (144 * 1024))
    A("s_mov_b64 s[30:31], s[6:7]")
    A.label("prep_pack_go")
    A("v_lshrrev_b32 v3, 3, v1")
    A("v_and_b32 v4, 7, v1")
    A("v_mul_lo_u32 v5, v3, s26")
    A("v_lshl_add_u32 v5, v4, 4, v5")
    A("v_add_u32 v5, s24, v5")
    A("s_lshl_b32 s29, s26, 3")
    for j in range(4):
        A("global_load_dwordx4 %s, v5, s[30:31]" % vr(16 + 4 * j, 4))
        if j < 3:
            A("v_add_u32 v5, s29, v5")
    A("v_mul_u32_u24 v6, 4608, v2")
    A("v_mul_u32_u24 v7, 144, v3")
    A("v_lshl_add_u32 v7, v4, 4, v7")
    A("v_add_u32 v7, v7, v6")
    A("s_waitcnt vmcnt(0)")
    for j in range(4):
        A("ds_write_b128 v7, %s offset:%d" % (vr(16 + 4 * j, 4), j * 8 * 144))
    A("v_and_b32 v8, 15, v1")
    A("v_lshrrev_b32 v9, 4, v1")
    A("v_mul_u32_u24 v9, %d, v9" % (8 * 144))
    A("v_lshl_add_u32 v9, v8, 1, v9")
    A("v_add_u32 v9, v9, v6")
    A("s_waitcnt lgkmcnt(0)")
    for qb in range(4):
        for i in range(8):
            A("ds_read_u16 v%d, v9 offset:%d" % (64 + 8 * qb + i, i * 144 + qb * 32))
    A("v_lshlrev_b32 v10, 4, v1")
    A("v_add_u32 v10, s27, v10")
    A("s_waitcnt lgkmcnt(0)")
    for qb in range(4):
        for k in range(4):
            A("v_lshl_or_b32 v%d, v%d, 16, v%d" % (32 + 4 * qb + k, 64 + 8 * qb + 2 * k + 1, 64 + 8 * qb + 2 * k))
    for qb in range(4):
        A("global_store_dwordx4 v10, %s, s[18:19]" % vr(32 + 4 * qb, 4))
        if qb < 3:
            A("v_add_u32 v10, s28, v10")
    A("s_branch prep_end")

    A.label("prep_ln1")
    A("s_load_dwordx2 s[4:5], s[0:1], %d" % KA_X)
    A("s_sub_u32 s20, s2, %d" % (N_KGEN + N_PACK))
    A("s_lshl_b32 s20, s20, 6")
    A("v_add_u32 v3, s20, v1")
    A("v_mul_u32_u24 v5, 1152, v3")
    A("v_mul_u32_u24 v6, 288, v2")
    A("v_add_u32 v5, v5, v6")
    A("s_waitcnt lgkmcnt(0)")
    XB = 16
    for j in range(18):
        A("global_load_dwordx4 %s, v5, s[4:5] offset:%d" % (vr(XB + 4 * j, 4), 16 * j))
    A("s_add_u32 s6, s18, %d" % WS_XH)
    A("s_addc_u32 s7, s19, 0")
    A("s_add_u32 s8, s18, %d" % WS_XT)
    A("s_addc_u32 s9, s19, 0")
    A("v_mov_b32 v7, 0")
    A("s_waitcnt vmcnt(0)")
    for k in range(72):
        unpack_lo("v8", "v%d" % (XB + k))
        unpack_hi("v9", "v%d" % (XB + k))
        A("v_add_f32 v7, v7, v8")
        A("v_add_f32 v7, v7, v9")
    A("v_lshlrev_b32 v10, 2, v0")
    A("v_lshlrev_b32 v11, 2, v1")
    A("ds_write_b32 v10, v7")
    A("s_waitcnt lgkmcnt(0)")
    A("s_barrier")
    for w in range(4):
        A("ds_read_b32 v%d, v11 offset:%d" % (96 + w, w * 256))
    A("s_waitcnt lgkmcnt(0)")
    A("v_add_f32 v96, v96, v97")
    A("v_add_f32 v98, v98, v99")
    A("v_add_f32 v96, v96, v98")
    A("s_mov_b32 s10, %s" % f32hex(1.0 / 576.0))
    A("v_mul_f32 v12, s10, v96")
    A("v_mov_b32 v7, 0")
    for k in range(72):
        unpack_lo("v8", "v%d" % (XB + k))
        unpack_hi("v9", "v%d" % (XB + k))
        A("v_sub_f32 v8, v8, v12")
        A("v_sub_f32 v9, v9, v12")
        A("v_fma_f32 v7, v8, v8, v7")
        A("v_fma_f32 v7, v9, v9, v7")
    A("s_barrier")
    A("ds_write_b32 v10, v7 offset:1024")
    A("s_waitcnt lgkmcnt(0)")
    A("s_barrier")
    for w in range(4):
        A("ds_read_b32 v%d, v11 offset:%d" % (96 + w, 1024 + w * 256))
    A("s_waitcnt lgkmcnt(0)")
    A("v_add_f32 v96, v96, v97")
    A("v_add_f32 v98, v98, v99")
    A("v_add_f32 v96, v96, v98")
    A("v_mul_f32 v13, s10, v96")
    round_bf16("v12", "v12")
    round_bf16("v13", "v13")
    A("v_add_f32 v13, %s, v13" % f32hex(1e-5))
    round_bf16("v13", "v13")
    A("v_sqrt_f32 v13, v13")
    A("s_nop 0")
    round_bf16("v13", "v13")
    A("v_rcp_f32 v13, v13")
    A("v_mul_u32_u24 v14, %d, v2" % (144 * 4096))
    A("v_lshl_add_u32 v14, v3, 1, v14")
    A("v_add_u32 v15, 4096, v14")
    for k in range(72):
        src = "v%d" % (XB + k)
        unpack_lo("v8", src)
        unpack_hi("v9", src)
        A("v_sub_f32 v8, v8, v12")
        A("v_sub_f32 v9, v9, v12")
        A("v_cvt_pk_bf16_f32 v8, v8, v9")
        unpack_hi("v9", "v8")
        unpack_lo("v8", "v8")
        A("v_mul_f32 v8, v8, v13")
        A("v_mul_f32 v9, v9, v13")
        A("v_cvt_pk_bf16_f32 v8, v8, v9")
        A("global_store_short v14, v8, s[6:7]")
        A("global_store_short_d16_hi v15, v8, s[6:7]")
        A("global_store_short v14, %s, s[8:9]" % src)
        A("global_store_short_d16_hi v15, %s, s[8:9]" % src)
        if k < 71:
            A("v_add_u32 v14, 8192, v14")
            A("v_add_u32 v15, 8192, v15")
    A("s_branch prep_end")

    A.label("prep_mod")
    A("s_load_dwordx4 s[4:7], s[0:1], %d" % KA_C)
    A("s_sub_u32 s20, s2, %d" % (N_KGEN + N_PACK + N_LN1))
    A("s_waitcnt lgkmcnt(0)")
    A("v_lshlrev_b32 v3, 1, v0")
    A("global_load_ushort v8, v3, s[4:5]")
    A("global_load_ushort v9, v3, s[4:5] offset:512")
    A("v_cmp_gt_u32 vcc, 64, v0")
    A("s_and_saveexec_b64 s[10:11], vcc")
    A("global_load_ushort v10, v3, s[4:5] offset:1024")
    A("s_mov_b64 exec, s[10:11]")
    A("s_mov_b32 s23, %s" % f32hex(-LOG2E))
    A("s_waitcnt vmcnt(0)")
    for r in (8, 9, 10):
        A("v_lshlrev_b32 v%d, 16, v%d" % (r, r))
        A("v_mul_f32 v11, s23, v%d" % r)
        A("v_exp_f32 v11, v11")
        A("s_nop 0")
        A("v_add_f32 v11, 1.0, v11")
        A("v_rcp_f32 v11, v11")
        A("s_nop 0")
        A("v_mul_f32 v%d, v%d, v11" % (r, r))
        round_bf16("v%d" % r, "v%d" % r)
    A("v_lshlrev_b32 v4, 2, v0")
    A("ds_write_b32 v4, v8")
    A("ds_write_b32 v4, v9 offset:1024")
    A("s_and_saveexec_b64 s[10:11], vcc")
    A("ds_write_b32 v4, v10 offset:2048")
    A("s_mov_b64 exec, s[10:11]")
    A("s_waitcnt lgkmcnt(0)")
    A("s_barrier")
    A("v_mul_u32_u24 v5, %d, v2" % (144 * 6912))
    A("s_lshl_b32 s21, s20, 7")
    A("v_lshl_add_u32 v5, v1, 1, v5")
    A("v_add_u32 v5, s21, v5")
    A("v_mul_u32_u24 v6, 576, v2")
    A("v_mov_b32 v7, 0")
    A("s_mov_b32 s22, 6912")
    for blk in range(18):
        for i in range(8):
            A("global_load_ushort v%d, v5, s[6:7]" % (16 + i))
            A("v_add_u32 v5, s22, v5")
        A("ds_read_b128 v[24:27], v6 offset:%d" % (blk * 32))
        A("ds_read_b128 v[28:31], v6 offset:%d" % (blk * 32 + 16))
        A("s_waitcnt vmcnt(0) lgkmcnt(0)")
        for i in range(8):
            A("v_lshlrev_b32 v%d, 16, v%d" % (16 + i, 16 + i))
            A("v_fma_f32 v7, v%d, v%d, v7" % (16 + i, 24 + i))
    A("s_barrier")
    A("ds_write_b32 v4, v7 offset:4096")
    A("s_waitcnt lgkmcnt(0)")
    A("s_barrier")
    A("v_lshlrev_b32 v11, 2, v1")
    for w in range(4):
        A("ds_read_b32 v%d, v11 offset:%d" % (96 + w, 4096 + w * 256))
    A("s_waitcnt lgkmcnt(0)")
    A("v_add_f32 v96, v96, v97")
    A("v_add_f32 v98, v98, v99")
    A("v_add_f32 v96, v96, v98")
    round_bf16("v96", "v96")
    A("s_lshl_b32 s21, s20, 8")
    A("v_add_u32 v11, s21, v11")
    A("v_cmp_gt_u32 vcc, 64, v0")
    A("s_and_saveexec_b64 s[10:11], vcc")
    A("global_store_dword v11, v96, s[18:19] offset:%d" % WS_MOD)
    A("s_mov_b64 exec, s[10:11]")
    A.label("prep_end")
    A("s_endpgm")


HB = 0
TB = 10240
CSZ = 4160
PSZ = 4 * CSZ
CONV_LDS = TB + 2 * PSZ


def gen_conv():
    kernel_begin("conv_kernel")
    A("s_cmp_ge_u32 s2, %d" % D)
    A("s_cbranch_scc1 conv_end")
    A("s_load_dwordx2 s[18:19], s[0:1], %d" % KA_WS)
    A("s_load_dwordx2 s[16:17], s[0:1], %d" % KA_DSK)
    A("v_and_b32 v1, 63, v0")
    A("v_lshrrev_b32 v2, 6, v0")
    A("s_lshl_b32 s20, s2, 2")
    A("s_waitcnt lgkmcnt(0)")
    A("s_add_u32 s4, s18, s20")
    A("s_addc_u32 s5, s19, 0")
    A("s_load_dword s10, s[4:5], %d" % (WS_MOD + 0 * 576 * 4))
    A("s_load_dword s11, s[4:5], %d" % (WS_MOD + 1 * 576 * 4))
    A("s_load_dword s12, s[4:5], %d" % (WS_MOD + 2 * 576 * 4))
    A("s_lshl_b32 s21, s2, 13")
    A("s_add_u32 s21, s21, %d" % WS_K)
    A("v_lshlrev_b32 v3, 5, v0")
    A("v_add_u32 v3, s21, v3")
    A("global_load_dwordx4 v[16:19], v3, s[18:19]")
    A("global_load_dwordx4 v[20:23], v3, s[18:19] offset:16")
    A("v_mov_b32 v24, 0")
    A("v_cmp_lt_u32 vcc, 0, v0")
    A("s_and_saveexec_b64 s[6:7], vcc")
    A("global_load_dword v24, v3, s[18:19] offset:-4")
    A("s_mov_b64 exec, s[6:7]")
    A("s_lshl_b32 s22, s2, 12")
    A("v_lshlrev_b32 v4, 4, v0")
    A("v_add_u32 v4, s22, v4")
    A("v_add_u32 v5, %d, v4" % WS_XH)
    A("global_load_dwordx4 v[28:31], v5, s[18:19]")
    A("v_add_u32 v5, %d, v4" % WS_XT)
    A("global_load_dwordx4 v[32:35], v5, s[18:19]")
    A("v_mov_b32 v6, s2")
    A("v_lshlrev_b32 v6, 1, v6")
    A("global_load_ushort v36, v6, s[16:17]")
    A("v_mov_b32 v40, 0")
    A("v_mov_b32 v41, 0")
    A("v_mov_b32 v42, 0")
    A("v_mov_b32 v43, 0")
    A("v_lshlrev_b32 v7, 4, v0")
    A("ds_write_b128 v7, v[40:43] offset:%d" % HB)
    A("v_cmp_gt_u32 vcc, 64, v0")
    A("s_and_saveexec_b64 s[6:7], vcc")
    A("ds_write_b128 v7, v[40:43] offset:%d" % (HB + 4096))
    A("s_mov_b64 exec, s[6:7]")
    A("v_cmp_gt_u32 vcc, 5, v0")
    A("s_and_saveexec_b64 s[6:7], vcc")
    for p in range(2):
        for c in range(4):
            A("ds_write_b128 v7, v[40:43] offset:%d" % (TB + p * PSZ + c * CSZ + 4080))
    A("s_mov_b64 exec, s[6:7]")
    A("s_waitcnt vmcnt(0) lgkmcnt(0)")
    A("s_barrier")
    kreg = [24] + list(range(16, 24))
    for i, r in enumerate(kreg):
        round_bf16("v%d" % (44 + i), "v%d" % r)
        A("v_sub_f32 v%d, v%d, v%d" % (53 + i, r, 44 + i))
    A("v_sub_u32 v8, 4080, v7")
    for p in range(2):
        base = 44 if p == 0 else 53
        for u in range(4):
            A("v_cvt_pk_bf16_f32 v%d, v%d, v%d" % (62 + u, base + 2 * u + 1, base + 2 * u))
            A("v_cvt_pk_bf16_f32 v%d, v%d, v%d" % (66 + u, base + 2 * u + 2, base + 2 * u + 1))
        for c in range(4):
            e = c & 1
            for u in range(4):
                imm = TB + p * PSZ + c * CSZ + 16 - 4 * u - 2 * e - 2 * c
                src = 62 + u if e == 0 else 66 + u
                A("ds_write_b32 v8, v%d offset:%d" % (src, imm))
    A("s_waitcnt lgkmcnt(0)")
    A("v_mov_b32 v9, s11")
    A("v_add_f32 v9, 1.0, v9")
    round_bf16("v9", "v9")
    for k in range(4):
        src = "v%d" % (28 + k)
        unpack_lo("v10", src)
        unpack_hi("v11", src)
        A("v_mul_f32 v10, v10, v9")
        A("v_mul_f32 v11, v11, v9")
        A("v_cvt_pk_bf16_f32 v10, v10, v11")
        unpack_hi("v11", "v10")
        unpack_lo("v10", "v10")
        A("v_add_f32 v10, s10, v10")
        A("v_add_f32 v11, s10, v11")
        A("v_cvt_pk_bf16_f32 v%d, v10, v11" % (28 + k))
    A("v_lshrrev_b32 v10, 2, v0")
    A("v_mul_u32_u24 v10, 80, v10")
    A("v_and_b32 v11, 3, v0")
    A("v_lshl_add_u32 v10, v11, 4, v10")
    A("ds_write_b128 v10, v[28:31] offset:%d" % (HB + 64 * 80))
    A("s_waitcnt lgkmcnt(0)")
    A("s_barrier")
    A("v_and_b32 v12, 31, v1")
    A("v_lshrrev_b32 v13, 5, v1")
    A("v_and_b32 v14, 1, v2")
    A("v_lshrrev_b32 v15, 1, v2")
    A("v_and_b32 v16, 3, v12")
    A("v_sub_u32 v16, 4, v16")
    A("v_and_b32 v16, 3, v16")
    A("v_mul_u32_u24 v17, %d, v14" % PSZ)
    A("v_mul_u32_u24 v18, %d, v16" % (CSZ - 2))
    A("v_add_u32 v17, v17, v18")
    A("v_lshlrev_b32 v18, 4, v13")
    A("v_add_u32 v17, v17, v18")
    A("v_lshlrev_b32 v18, 1, v12")
    A("v_sub_u32 v17, v17, v18")
    A("v_lshlrev_b32 v18, 6, v15")
    A("v_sub_u32 v17, v17, v18")
    A("v_add_u32 v17, %d, v17" % (TB + 4096 - 128 * 31))
    A("v_sub_u32 v19, v12, v15")
    A("v_add_u32 v19, 2, v19")
    A("v_mul_u32_u24 v19, 80, v19")
    A("v_lshlrev_b32 v18, 4, v13")
    A("v_add_u32 v19, v19, v18")
    if HB:
        A("v_add_u32 v19, %d, v19" % HB)
    for r in range(32):
        A("v_accvgpr_write_b32 a%d, 0" % r)
    steps = [(i, ks) for i in range(32) for ks in range(2)]

    def issue(idx, buf):
        i, ks = steps[idx]
        immA = 128 * (31 - i) + 32 * ks
        A("ds_read_b64 %s, v17 offset:%d" % (vr(64 + 4 * buf, 2), immA))
        A("ds_read_b64 %s, v17 offset:%d" % (vr(66 + 4 * buf, 2), immA + 8))
        A("ds_read_b128 %s, v19 offset:%d" % (vr(72 + 4 * buf, 4), (2 * (31 - i) + 32) * 80 + 32 * ks))
        n = 3
        if i < 16:
            A("ds_read_b128 %s, v19 offset:%d" % (vr(80 + 4 * buf, 4), (2 * (31 - i)) * 80 + 32 * ks))
            n = 4
        return n
    issue(0, 0)
    for idx in range(len(steps)):
        buf = idx & 1
        nnext = 0
        if idx + 1 < len(steps):
            nnext = issue(idx + 1, buf ^ 1)
        A("s_waitcnt lgkmcnt(%d)" % nnext)
        i, ks = steps[idx]
        A("v_mfma_f32_32x32x16_bf16 a[16:31], %s, %s, a[16:31]" % (vr(64 + 4 * buf, 4), vr(72 + 4 * buf, 4)))
        if i < 16:
            A("v_mfma_f32_32x32x16_bf16 a[0:15], %s, %s, a[0:15]" % (vr(64 + 4 * buf, 4), vr(80 + 4 * buf, 4)))
    nop(16)
    A("s_barrier")
    A("v_lshlrev_b32 v20, 13, v2")
    A("v_lshlrev_b32 v21, 7, v12")
    A("v_lshlrev_b32 v22, 4, v13")
    A("v_add3_u32 v20, v20, v21, v22")
    for tcol in range(2):
        for g in range(4):
            for r in range(4):
                A("v_accvgpr_read_b32 v%d, a%d" % (64 + r, 16 * tcol + 4 * g + r))
            A("ds_write_b128 v20, v[64:67] offset:%d" % (4096 * tcol + 32 * g))
    A("s_waitcnt lgkmcnt(0)")
    A("s_barrier")
    A("v_lshlrev_b32 v21, 5, v0")
    for w in range(4):
        A("ds_read_b128 %s, v21 offset:%d" % (vr(64 + 8 * w, 4), w * 8192))
        A("ds_read_b128 %s, v21 offset:%d" % (vr(68 + 8 * w, 4), w * 8192 + 16))
    A("v_lshlrev_b32 v36, 16, v36")
    A("s_waitcnt lgkmcnt(0) vmcnt(0)")
    for e in range(8):
        A("v_add_f32 v%d, v%d, v%d" % (64 + e, 64 + e, 72 + e))
        A("v_add_f32 v%d, v%d, v%d" % (80 + e, 80 + e, 88 + e))
        A("v_add_f32 v%d, v%d, v%d" % (64 + e, 64 + e, 80 + e))
    for k in range(4):
        y0, y1 = 64 + 2 * k, 65 + 2 * k
        A("v_cvt_pk_bf16_f32 v10, v%d, v%d" % (y0, y1))
        unpack_lo("v11", "v%d" % (28 + k))
        unpack_hi("v12", "v%d" % (28 + k))
        A("v_mul_f32 v11, v11, v36")
        A("v_mul_f32 v12, v12, v36")
        A("v_cvt_pk_bf16_f32 v11, v11, v12")
        unpack_lo("v13", "v10")
        unpack_hi("v14", "v10")
        unpack_lo("v15", "v11")
        unpack_hi("v16", "v11")
        A("v_add_f32 v13, v13, v15")
        A("v_add_f32 v14, v14, v16")
        A("v_cvt_pk_bf16_f32 v13, v13, v14")
        unpack_hi("v14", "v13")
        unpack_lo("v13", "v13")
        A("v_mul_f32 v13, s12, v13")
        A("v_mul_f32 v14, s12, v14")
        A("v_cvt_pk_bf16_f32 v13, v13, v14")
        unpack_hi("v14", "v13")
        unpack_lo("v13", "v13")
        unpack_lo("v15", "v%d" % (32 + k))
        unpack_hi("v16", "v%d" % (32 + k))
        A("v_add_f32 v13, v13, v15")
        A("v_add_f32 v14, v14, v16")
        A("v_cvt_pk_bf16_f32 v%d, v13, v14" % (40 + k))
    A("v_add_u32 v5, %d, v4" % WS_X1T)
    A("global_store_dwordx4 v5, v[40:43], s[18:19]")
    A.label("conv_end")
    A("s_endpgm")


RS = 1168
H2B = 0
H1B = 64 * RS
MLP_LDS = 2 * 64 * RS + 2048


def gen_mlp():
    kernel_begin("mlp_kernel")
    A("s_cmp_ge_u32 s2, 256")
    A("s_cbranch_scc1 mlp_end")
    A("s_load_dwordx2 s[18:19], s[0:1], %d" % KA_WS)
    A("v_and_b32 v1, 63, v0")
    A("v_lshrrev_b32 v2, 6, v0")
    A("s_lshr_b32 s20, s2, 3")
    A("s_and_b32 s21, s2, 7")
    A("s_lshl_b32 s22, s20, 6")
    A("v_readfirstlane_b32 s23, v2")
    A("s_waitcnt lgkmcnt(0)")
    A("v_add_u32 v3, s22, v1")
    A("v_mul_u32_u24 v4, %d, v2" % (144 * 4096))
    A("v_lshl_add_u32 v4, v3, 1, v4")
    A("v_add_u32 v4, %d, v4" % WS_X1T)
    A("v_add_u32 v5, 4096, v4")
    XB = 64
    for k0 in range(0, 72, 12):
        for k in range(k0, k0 + 12):
            A("global_load_ushort v%d, v4, s[18:19]" % (24 + 2 * (k - k0)))
            A("global_load_ushort v%d, v5, s[18:19]" % (25 + 2 * (k - k0)))
            if k < 71:
                A("v_add_u32 v4, 8192, v4")
                A("v_add_u32 v5, 8192, v5")
        A("s_waitcnt vmcnt(0)")
        for k in range(k0, k0 + 12):
            A("v_lshl_or_b32 v%d, v%d, 16, v%d" % (XB + k, 25 + 2 * (k - k0), 24 + 2 * (k - k0)))
    A("v_lshlrev_b32 v6, 2, v0")
    A("v_add_u32 v14, %d, v6" % (WS_MOD + 4 * 576 * 4))
    A("v_add_u32 v15, %d, v6" % (WS_MOD + 3 * 576 * 4))
    A("global_load_dword v8, v14, s[18:19]")
    A("global_load_dword v9, v14, s[18:19] offset:1024")
    A("global_load_dword v10, v15, s[18:19]")
    A("global_load_dword v11, v15, s[18:19] offset:1024")
    A("v_cmp_gt_u32 vcc, 64, v0")
    A("s_and_saveexec_b64 s[6:7], vcc")
    A("global_load_dword v12, v14, s[18:19] offset:2048")
    A("global_load_dword v13, v15, s[18:19] offset:2048")
    A("s_mov_b64 exec, s[6:7]")
    A("s_waitcnt vmcnt(0)")
    for r in (8, 9, 12):
        A("v_add_f32 v%d, 1.0, v%d" % (r, r))
        round_bf16("v%d" % r, "v%d" % r)
    A("v_add_u32 v23, %d, v6" % H1B)
    A("ds_write_b32 v23, v8")
    A("ds_write_b32 v23, v9 offset:1024")
    A("ds_write_b32 v23, v10 offset:4096")
    A("ds_write_b32 v23, v11 offset:5120")
    A("s_and_saveexec_b64 s[6:7], vcc")
    A("ds_write_b32 v23, v12 offset:2048")
    A("ds_write_b32 v23, v13 offset:6144")
    A("s_mov_b64 exec, s[6:7]")
    A("v_mov_b32 v7, 0")
    for k in range(72):
        unpack_lo("v8", "v%d" % (XB + k))
        unpack_hi("v9", "v%d" % (XB + k))
        A("v_add_f32 v7, v7, v8")
        A("v_add_f32 v7, v7, v9")
    A("v_lshlrev_b32 v10, 2, v0")
    A("v_lshlrev_b32 v11, 2, v1")
    A("v_add_u32 v10, %d, v10" % H1B)
    A("v_add_u32 v11, %d, v11" % H1B)
    SB = 8192
    A("ds_write_b32 v10, v7 offset:%d" % SB)
    A("s_waitcnt lgkmcnt(0)")
    A("s_barrier")
    for w in range(4):
        A("ds_read_b32 v%d, v11 offset:%d" % (16 + w, SB + w * 256))
    A("s_waitcnt lgkmcnt(0)")
    A("v_add_f32 v16, v16, v17")
    A("v_add_f32 v18, v18, v19")
    A("v_add_f32 v16, v16, v18")
    A("s_mov_b32 s10, %s" % f32hex(1.0 / 576.0))
    A("v_mul_f32 v12, s10, v16")
    A("v_mov_b32 v7, 0")
    for k in range(72):
        unpack_lo("v8", "v%d" % (XB + k))
        unpack_hi("v9", "v%d" % (XB + k))
        A("v_sub_f32 v8, v8, v12")
        A("v_sub_f32 v9, v9, v12")
        A("v_fma_f32 v7, v8, v8, v7")
        A("v_fma_f32 v7, v9, v9, v7")
    A("ds_write_b32 v10, v7 offset:%d" % (SB + 1024))
    A("s_waitcnt lgkmcnt(0)")
    A("s_barrier")
    for w in range(4):
        A("ds_read_b32 v%d, v11 offset:%d" % (16 + w, SB + 1024 + w * 256))
    A("s_waitcnt lgkmcnt(0)")
    A("v_add_f32 v16, v16, v17")
    A("v_add_f32 v18, v18, v19")
    A("v_add_f32 v16, v16, v18")
    A("v_mul_f32 v13, s10, v16")
    round_bf16("v12", "v12")
    round_bf16("v13", "v13")
    A("v_add_f32 v13, %s, v13" % f32hex(1e-5))
    round_bf16("v13", "v13")
    A("v_sqrt_f32 v13, v13")
    A("s_nop 0")
    round_bf16("v13", "v13")
    A("v_rcp_f32 v13, v13")
    A("v_mul_u32_u24 v14, %d, v1" % RS)
    A("v_mul_u32_u24 v15, 288, v2")
    A("v_add_u32 v14, v14, v15")
    A("v_mul_u32_u24 v20, 576, v2")
    A("v_add_u32 v20, %d, v20" % H1B)
    A("v_mul_u32_u24 v21, 1152, v3")
    A("v_add_u32 v21, v21, v15")
    A("v_add_u32 v21, %d, v21" % WS_X1R)
    for g in range(18):
        A("ds_read_b128 v[24:27], v20 offset:%d" % (g * 32))
        A("ds_read_b128 v[28:31], v20 offset:%d" % (g * 32 + 16))
        A("ds_read_b128 v[32:35], v20 offset:%d" % (4096 + g * 32))
        A("ds_read_b128 v[36:39], v20 offset:%d" % (4096 + g * 32 + 16))
        A("s_waitcnt lgkmcnt(0)")
        for k in range(4):
            src = "v%d" % (XB + 4 * g + k)
            unpack_lo("v8", src)
            unpack_hi("v9", src)
            A("v_sub_f32 v8, v8, v12")
            A("v_sub_f32 v9, v9, v12")
            A("v_cvt_pk_bf16_f32 v8, v8, v9")
            unpack_hi("v9", "v8")
            unpack_lo("v8", "v8")
            A("v_mul_f32 v8, v8, v13")
            A("v_mul_f32 v9, v9, v13")
            A("v_cvt_pk_bf16_f32 v8, v8, v9")
            unpack_hi("v9", "v8")
            unpack_lo("v8", "v8")
            A("v_mul_f32 v8, v8, v%d" % (24 + 2 * k))
            A("v_mul_f32 v9, v9, v%d" % (25 + 2 * k))
            A("v_cvt_pk_bf16_f32 v8, v8, v9")
            unpack_hi("v9", "v8")
            unpack_lo("v8", "v8")
            A("v_add_f32 v8, v8, v%d" % (32 + 2 * k))
            A("v_add_f32 v9, v9, v%d" % (33 + 2 * k))
            A("v_cvt_pk_bf16_f32 v%d, v8, v9" % (40 + k))
        A("ds_write_b128 v14, v[40:43] offset:%d" % (H2B + g * 16))
        A("s_cmp_lg_u32 s21, 0")
        A("s_cbranch_scc1 mlp_skip_x1r_%d" % g)
        A("global_store_dwordx4 v21, %s, s[18:19] offset:%d" % (vr(XB + 4 * g, 4), g * 16))
        A.label("mlp_skip_x1r_%d" % g)
    A("s_waitcnt lgkmcnt(0)")
    A("s_barrier")

    A("v_and_b32 v16, 15, v1")
    A("v_lshrrev_b32 v17, 4, v1")
    A("v_mul_u32_u24 v18, %d, v16" % RS)
    A("v_lshl_add_u32 v18, v17, 4, v18")
    A("v_lshlrev_b32 v19, 4, v1")

    AB = [24, 60]
    BB = [96, 112]

    def gemm(lds_base, a_sbase, a_blk_stride_ks, nks):
        for r in range(144):
            A("v_accvgpr_write_b32 a%d, 0" % r)
        A("v_add_u32 v22, %s, v19" % a_sbase)
        A("v_add_u32 v23, %d, v18" % lds_base)

        def issue(ks, buf):
            for j in range(9):
                A("global_load_dwordx4 %s, v22, s[18:19] offset:%d" % (vr(AB[buf] + 4 * j, 4), 0) if False else
                  "global_load_dwordx4 %s, v%d, s[18:19]" % (vr(AB[buf] + 4 * j, 4), 128 + j))
            for nt in range(4):
                A("ds_read_b128 %s, v23 offset:%d" % (vr(BB[buf] + 4 * nt, 4), nt * 16 * RS + ks * 64))
        for j in range(9):
            A("v_add_u32 v%d, %d, v22" % (128 + j, j * a_blk_stride_ks))
        issue(0, 0)
        for ks in range(nks):
            buf = ks & 1
            if ks + 1 < nks:
                for j in range(9):
                    A("v_add_u32 v%d, 1024, v%d" % (128 + j, 128 + j))
                issue(ks + 1, buf ^ 1)
                A("s_waitcnt vmcnt(9) lgkmcnt(4)")
            else:
                A("s_waitcnt vmcnt(0) lgkmcnt(0)")
            for j in range(9):
                for nt in range(4):
                    acc = (j * 4 + nt) * 4
                    A("v_mfma_f32_16x16x32_bf16 %s, %s, %s, %s" % (ar_(acc, 4), vr(AB[buf] + 4 * j, 4), vr(BB[buf] + 4 * nt, 4), ar_(acc, 4)))
        nop(16)

    A("s_mul_i32 s24, s21, 36")
    A("s_mul_i32 s25, s23, 9")
    A("s_add_u32 s24, s24, s25")
    A("s_mul_i32 s24, s24, %d" % (18 * 1024))
    A("s_add_u32 s24, s24, %d" % WS_P1)
    gemm(H2B, "s24", 18 * 1024, 18)
    A("v_mul_u32_u24 v20, %d, v16" % RS)
    A("v_lshl_add_u32 v20, v17, 3, v20")
    A("v_mul_u32_u24 v21, 288, v2")
    A("v_add_u32 v20, v20, v21")
    A("v_add_u32 v20, %d, v20" % H1B)
    A("s_mov_b32 s11, %s" % f32hex(-LOG2E))
    for j in range(9):
        for nt in range(4):
            acc = (j * 4 + nt) * 4
            for r in range(4):
                A("v_accvgpr_read_b32 v%d, a%d" % (24 + r, acc + r))
            A("v_cvt_pk_bf16_f32 v24, v24, v25")
            A("v_cvt_pk_bf16_f32 v26, v26, v27")
            unpack_hi("v25", "v24")
            unpack_lo("v24", "v24")
            unpack_hi("v27", "v26")
            unpack_lo("v26", "v26")
            for r in range(4):
                A("v_mul_f32 v%d, s11, v%d" % (28 + r, 24 + r))
            for r in range(4):
                A("v_exp_f32 v%d, v%d" % (28 + r, 28 + r))
            A("s_nop 0")
            for r in range(4):
                A("v_add_f32 v%d, 1.0, v%d" % (28 + r, 28 + r))
            for r in range(4):
                A("v_rcp_f32 v%d, v%d" % (28 + r, 28 + r))
            A("s_nop 0")
            for r in range(4):
                A("v_mul_f32 v%d, v%d, v%d" % (24 + r, 24 + r, 28 + r))
            A("v_cvt_pk_bf16_f32 v24, v24, v25")
            A("v_cvt_pk_bf16_f32 v25, v26, v27")
            A("ds_write_b64 v20, v[24:25] offset:%d" % (nt * 16 * RS + j * 32))
    A("s_waitcnt lgkmcnt(0)")
    A("s_barrier")
    A("s_mul_i32 s24, s23, %d" % (9 * 144))
    A("s_mul_i32 s25, s21, 18")
    A("s_add_u32 s24, s24, s25")
    A("s_lshl_b32 s24, s24, 10")
    A("s_add_u32 s24, s24, %d" % WS_P2)
    gemm(H1B, "s24", 144 * 1024, 18)
    A("v_add_u32 v20, s22, v16")
    A("v_mul_u32_u24 v20, 2304, v20")
    A("v_lshl_add_u32 v20, v17, 4, v20")
    A("v_mul_u32_u24 v21, 576, v2")
    A("v_add_u32 v20, v20, v21")
    A("s_mul_i32 s24, s21, %d" % (L * D * 4))
    A("s_add_u32 s24, s24, %d" % WS_PART)
    A("v_add_u32 v20, s24, v20")
    for nt in range(4):
        for j in range(9):
            acc = (j * 4 + nt) * 4
            A("global_store_dwordx4 v20, %s, s[18:19] offset:%d" % (ar_(acc, 4), j * 64))
        if nt < 3:
            A("v_add_u32 v20, %d, v20" % (16 * 2304))
    A.label("mlp_end")
    A("s_endpgm")


RED_WGS = L * D // 8 // 256


def gen_reduce():
    kernel_begin("reduce_kernel")
    A("s_cmp_ge_u32 s2, %d" % RED_WGS)
    A("s_cbranch_scc1 red_end")
    A("s_load_dwordx2 s[18:19], s[0:1], %d" % KA_WS)
    A("s_load_dwordx2 s[16:17], s[0:1], %d" % KA_OUT)
    A("s_lshl_b32 s20, s2, 8")
    A("v_add_u32 v1, s20, v0")
    A("v_lshlrev_b32 v2, 5, v1")
    A("v_lshlrev_b32 v3, 4, v1")
    A("s_mov_b32 s21, %d" % ((2**32 + 71) // 72))
    A("v_mul_hi_u32 v4, v1, s21")
    A("v_mul_u32_u24 v5, 72, v4")
    A("v_sub_u32 v5, v1, v5")
    A("v_lshlrev_b32 v5, 5, v5")
    A("v_add_u32 v5, %d, v5" % (WS_MOD + 5 * 576 * 4))
    A("s_waitcnt lgkmcnt(0)")
    A("global_load_dwordx4 v[8:11], v5, s[18:19]")
    A("global_load_dwordx4 v[12:15], v5, s[18:19] offset:16")
    A("v_add_u32 v6, %d, v3" % WS_X1R)
    A("global_load_dwordx4 v[16:19], v6, s[18:19]")
    A("v_add_u32 v7, %d, v2" % WS_PART)
    for s in range(NSPLIT):
        A("global_load_dwordx4 %s, v7, s[18:19]" % vr(32 + 8 * s, 4))
        A("global_load_dwordx4 %s, v7, s[18:19] offset:16" % vr(36 + 8 * s, 4))
        if s < NSPLIT - 1:
            A("v_add_u32 v7, %d, v7" % (L * D * 4))
    A("s_waitcnt vmcnt(0)")
    for s in range(1, NSPLIT):
        for e in range(8):
            A("v_add_f32 v%d, v%d, v%d" % (32 + e, 32 + e, 32 + 8 * s + e))
    for k in range(4):
        A("v_cvt_pk_bf16_f32 v20, v%d, v%d" % (32 + 2 * k, 33 + 2 * k))
        unpack_hi("v21", "v20")
        unpack_lo("v20", "v20")
        A("v_mul_f32 v20, v20, v%d" % (8 + 2 * k))
        A("v_mul_f32 v21, v21, v%d" % (9 + 2 * k))
        A("v_cvt_pk_bf16_f32 v20, v20, v21")
        unpack_hi("v21", "v20")
        unpack_lo("v20", "v20")
        unpack_lo("v22", "v%d" % (16 + k))
        unpack_hi("v23", "v%d" % (16 + k))
        A("v_add_f32 v20, v20, v22")
        A("v_add_f32 v21, v21, v23")
        A("v_cvt_pk_bf16_f32 v%d, v20, v21" % (24 + k))
    A("global_store_dwordx4 v3, v[24:27], s[16:17]")
    A.label("red_end")
    A("s_endpgm")


def main():
    hdr = open(OUT + ".ref").read().split("; @launch")[0]
    out = [hdr]
    out.append("; @launch kernel=prep_kernel grid=(%d,1,1) block=(256,1,1) lds=%d\n" % (PREP_WGS, PREP_LDS))
    out.append("; @launch kernel=conv_kernel grid=(%d,1,1) block=(256,1,1) lds=%d\n" % (D, CONV_LDS))
    out.append("; @launch kernel=mlp_kernel grid=(256,1,1) block=(256,1,1) lds=%d\n" % MLP_LDS)
    out.append("; @launch kernel=reduce_kernel grid=(%d,1,1) block=(256,1,1) lds=0\n" % RED_WGS)
    out.append('.amdgcn_target "amdgcn-amd-amdhsa--gfx950"\n')
    gen_prep()
    gen_conv()
    gen_mlp()
    gen_reduce()
    out.append(A.text())
    out.append(kernel_desc("prep_kernel", 144))
    out.append(kernel_desc("conv_kernel", 96, agpr=32))
    out.append(kernel_desc("mlp_kernel", 140, agpr=144))
    out.append(kernel_desc("reduce_kernel", 100))
    open(OUT, "w").write("".join(out))
    print("wrote", OUT, "MLP_LDS", MLP_LDS, "CONV_LDS", CONV_LDS)


if __name__ == "__main__":
    main()
```

```python
import sys, math, struct

OUT = "adaLN_cond__ssm_conv_s4__dense_activation_silu__prompt.s"

L = 2048
D = 576
NS = 128
F = 4608

WS_MOD = 0
WS_XT = 16384
WS_XH = WS_XT + D * L * 2
WS_X1T = WS_XH + D * L * 2
WS_X1R = WS_X1T + D * L * 2
WS_H2 = WS_X1R + D * L * 2
WS_K = WS_H2 + D * L * 2
WS_P1 = WS_K + D * L * 4
WS_P2 = WS_P1 + D * F * 2
WS_PART = WS_P2 + D * F * 2
NSPLIT = 8
import os
FLAGS = set(os.environ.get('GENFLAGS','').split(','))
WS_END = WS_PART + NSPLIT * L * D * 4
assert WS_END < 268435456

KA_X, KA_ARE, KA_AIM, KA_BRE, KA_BIM, KA_CRE, KA_CIM, KA_LDT, KA_DSK = [8 * i for i in range(9)]
KA_W1, KA_W2, KA_C, KA_WMOD, KA_OUT, KA_DBG, KA_WS = 80, 88, 96, 104, 112, 120, 128

LOG2E = 1.4426950408889634
INV2PI = 0.15915494309189535


def f32hex(x):
    return "0x%08x" % struct.unpack("<I", struct.pack("<f", x))[0]


class Asm:
    def __init__(self):
        self.lines = []

    def __call__(self, s):
        self.lines.append("    " + s)

    def label(self, l):
        self.lines.append(l + ":")

    def raw(self, s):
        self.lines.append(s)

    def comment(self, s):
        self.lines.append("    ; " + s)

    def text(self):
        return "\n".join(self.lines) + "\n"


A = Asm()


def kernel_begin(name):
    A.raw(".text")
    A.raw(".globl %s" % name)
    A.raw(".p2align 8")
    A.raw(".type %s,@function" % name)
    A.label(name)


def kernel_desc(name, vgpr, sgpr=96, agpr=0):
    acc_off = ((vgpr + 3) // 4) * 4
    nfv = acc_off + agpr
    return """.section .rodata,"a"
.p2align 6
.amdhsa_kernel %s
  .amdhsa_next_free_vgpr %d
  .amdhsa_next_free_sgpr %d
  .amdhsa_accum_offset %d
  .amdhsa_group_segment_fixed_size 0
  .amdhsa_kernarg_size 136
  .amdhsa_user_sgpr_count 2
  .amdhsa_user_sgpr_kernarg_segment_ptr 1
  .amdhsa_system_sgpr_workgroup_id_x 1
.end_amdhsa_kernel
""" % (name, nfv, sgpr, acc_off)


def vr(base, n):
    return "v[%d:%d]" % (base, base + n - 1)


def ar_(base, n):
    return "a[%d:%d]" % (base, base + n - 1)


def sr(base, n=2):
    return "s[%d:%d]" % (base, base + n - 1)


def nop(n):
    while n > 0:
        k = min(n, 16)
        A("s_nop %d" % (k - 1))
        n -= k


def unpack_lo(dst, src):
    A("v_lshlrev_b32 %s, 16, %s" % (dst, src))


def unpack_hi(dst, src):
    A("v_and_b32 %s, 0xffff0000, %s" % (dst, src))


def round_bf16(dst, src):
    A("v_cvt_pk_bf16_f32 %s, %s, %s" % (dst, src, src))
    A("v_lshlrev_b32 %s, 16, %s" % (dst, dst))


N_KGEN = D
N_PACK = 648
N_LN1 = 32
N_MOD = 54
PREP_WGS = N_KGEN + N_PACK + N_LN1 + N_MOD
PREP_LDS = 20480


def gen_prep():
    kernel_begin("prep_kernel")
    A("s_cmp_ge_u32 s2, %d" % PREP_WGS)
    A("s_cbranch_scc1 prep_end")
    A("s_load_dwordx2 s[18:19], s[0:1], %d" % KA_WS)
    A("v_and_b32 v1, 63, v0")
    A("v_lshrrev_b32 v2, 6, v0")
    A("s_cmp_lt_u32 s2, %d" % N_LN1)
    A("s_cbranch_scc1 prep_ln1")
    A("s_cmp_lt_u32 s2, %d" % (N_LN1 + N_MOD))
    A("s_cbranch_scc1 prep_mod")
    A("s_sub_u32 s2, s2, %d" % (N_LN1 + N_MOD))
    A("s_cmp_lt_u32 s2, %d" % N_KGEN)
    A("s_cbranch_scc1 prep_kgen")
    A("s_branch prep_pack")

    A.label("prep_kgen")
    A("s_load_dwordx4 s[4:7], s[0:1], %d" % KA_ARE)
    A("s_load_dwordx4 s[8:11], s[0:1], %d" % KA_BRE)
    A("s_load_dwordx4 s[12:15], s[0:1], %d" % KA_CRE)
    A("s_load_dwordx2 s[16:17], s[0:1], %d" % KA_LDT)
    A("v_and_b32 v3, 15, v1")
    A("v_lshrrev_b32 v4, 4, v1")
    A("v_lshrrev_b32 v5, 1, v4")
    A("v_and_b32 v6, 1, v4")
    A("v_cmp_eq_u32 s[20:21], 1, v6")
    A("s_lshl_b32 s22, s2, 8")
    A("v_lshlrev_b32 v7, 6, v2")
    A("v_lshlrev_b32 v8, 5, v5")
    A("v_add3_u32 v7, v7, v8, s22")
    A("v_cvt_f32_u32 v9, v3")
    A("s_mov_b32 s23, %s" % f32hex(LOG2E))
    A("s_mov_b32 s24, %s" % f32hex(INV2PI))
    A("v_mul_f32 v10, s23, v9")
    A("v_mul_f32 v11, s24, v9")
    A("v_mul_f32 v12, 16.0, v10")
    A("v_mul_f32 v13, 16.0, v11")
    A("s_mov_b32 s25, %s" % f32hex(256.0 * LOG2E))
    A("s_mov_b32 s26, %s" % f32hex(256.0 * INV2PI))
    A("v_mov_b32 v14, s2")
    A("v_lshlrev_b32 v14, 1, v14")
    A("s_waitcnt lgkmcnt(0)")
    PB = 16
    for ai, sp in enumerate([4, 6, 8, 10, 12, 14]):
        A("global_load_dwordx4 %s, v7, %s" % (vr(PB + 8 * ai, 4), sr(sp)))
        A("global_load_dwordx4 %s, v7, %s offset:16" % (vr(PB + 8 * ai + 4, 4), sr(sp)))
    A("global_load_ushort v15, v14, s[16:17]")
    for r in range(16):
        A("v_mov_b32 v%d, 0" % (128 + r))
    A("s_waitcnt vmcnt(0)")
    A("v_lshlrev_b32 v15, 16, v15")
    A("v_mul_f32 v15, s23, v15")
    A("v_exp_f32 v15, v15")
    A("s_nop 0")
    round_bf16("v15", "v15")

    T = {}
    nxt = [64]

    def t(name):
        if name not in T:
            T[name] = nxt[0]
            nxt[0] += 1
            assert nxt[0] <= 128, "kgen temps overflow"
        return "v%d" % T[name]

    def cexp(outr, outi, ar, ai, cl, cp):
        A("v_mul_f32 %s, %s, %s" % (t("e_t"), cl, ar))
        A("v_mul_f32 %s, %s, %s" % (t("e_r"), cp, ai))
        A("v_exp_f32 %s, %s" % (t("e_m"), t("e_t")))
        A("v_fract_f32 %s, %s" % (t("e_r"), t("e_r")))
        A("v_cos_f32 %s, %s" % (t("e_c"), t("e_r")))
        A("v_sin_f32 %s, %s" % (t("e_s"), t("e_r")))
        A("s_nop 0")
        A("v_mul_f32 %s, %s, %s" % (outr, t("e_m"), t("e_c")))
        A("v_mul_f32 %s, %s, %s" % (outi, t("e_m"), t("e_s")))

    def cmul(outr, outi, ar, ai, br, bi):
        A("v_mul_f32 %s, %s, %s" % (outr, ar, br))
        A("v_mul_f32 %s, %s, %s" % (outi, ar, bi))
        A("v_fma_f32 %s, -%s, %s, %s" % (outr, ai, bi, outr))
        A("v_fma_f32 %s, %s, %s, %s" % (outi, ai, br, outi))

    def csq(outr, outi, ar, ai):
        A("v_mul_f32 %s, %s, %s" % (outr, ar, ar))
        A("v_mul_f32 %s, %s, %s" % (outi, ar, ai))
        A("v_fma_f32 %s, -%s, %s, %s" % (outr, ai, ai, outr))
        A("v_add_f32 %s, %s, %s" % (outi, outi, outi))

    for q in range(16):
        reg = q // 2
        half = q % 2

        def ext(dst, arr):
            src = "v%d" % (PB + 8 * arr + reg)
            if half == 0:
                unpack_lo(dst, src)
            else:
                unpack_hi(dst, src)
        A.comment("kgen q=%d" % q)
        ext(t("are"), 0); ext(t("aim"), 1); ext(t("bre"), 2); ext(t("bim"), 3); ext(t("cre"), 4); ext(t("cim"), 5)
        A("v_mul_f32 %s, v15, %s" % (t("ar"), t("are")))
        A("v_mul_f32 %s, v15, %s" % (t("ai"), t("aim")))
        A("v_mul_f32 %s, v15, %s" % (t("dbr"), t("bre")))
        A("v_mul_f32 %s, v15, %s" % (t("dbi"), t("bim")))
        cmul(t("cbr"), t("cbi"), t("cre"), t("cim"), t("dbr"), t("dbi"))
        cexp(t("xr"), t("xi"), t("ar"), t("ai"), "v12", "v13")
        cexp(t("e0r"), t("e0i"), t("ar"), t("ai"), "v10", "v11")
        cexp(t("f1r"), t("f1i"), t("ar"), t("ai"), "s25", "s26")
        cmul(t("g0r"), t("g0i"), t("cbr"), t("cbi"), t("xr"), t("xi"))
        csq(t("x2r"), t("x2i"), t("xr"), t("xi"))
        csq(t("x4r"), t("x4i"), t("x2r"), t("x2i"))
        csq(t("x8r"), t("x8i"), t("x4r"), t("x4i"))
        csq(t("f2r"), t("f2i"), t("f1r"), t("f1i"))
        csq(t("f4r"), t("f4i"), t("f2r"), t("f2i"))
        cmul(t("u1r"), t("u1i"), t("cbr"), t("cbi"), t("f1r"), t("f1i"))
        cmul(t("g1r"), t("g1i"), t("u1r"), t("u1i"), t("x2r"), t("x2i"))
        cmul(t("u1r"), t("u1i"), t("cbr"), t("cbi"), t("f2r"), t("f2i"))
        cmul(t("g2r"), t("g2i"), t("u1r"), t("u1i"), t("x4r"), t("x4i"))
        cmul(t("u1r"), t("u1i"), t("cbr"), t("cbi"), t("f4r"), t("f4i"))
        cmul(t("g3r"), t("g3i"), t("u1r"), t("u1i"), t("x8r"), t("x8i"))
        csq(t("e1r"), t("e1i"), t("e0r"), t("e0i"))
        csq(t("e2r"), t("e2i"), t("e1r"), t("e1i"))
        csq(t("e3r"), t("e3i"), t("e2r"), t("e2i"))
        for s in range(4):
            A("v_cndmask_b32_e64 %s, %s, -%s, s[20:21]" % (t("a%d" % s), t("g%dr" % s), t("g%di" % s)))
            A("v_cndmask_b32_e64 %s, %s, %s, s[20:21]" % (t("b%d" % s), t("e%dr" % s), t("e%di" % s)))
        A("s_nop 1")
        for s in range(4):
            A("v_mfma_f32_16x16x4_f32 %s, %s, %s, %s" % (vr(128 + 4 * s, 4), t("a%d" % s), t("b%d" % s), vr(128 + 4 * s, 4)))
    nop(16)
    A("v_lshlrev_b32 v64, 12, v2")
    A("v_lshlrev_b32 v65, 8, v4")
    A("v_lshlrev_b32 v66, 2, v3")
    A("v_add3_u32 v64, v64, v65, v66")
    for s in range(4):
        for r in range(4):
            A("ds_write_b32 v64, v%d offset:%d" % (128 + 4 * s + r, s * 1024 + r * 64))
    A("s_waitcnt lgkmcnt(0)")
    A("s_barrier")
    A("v_lshlrev_b32 v64, 3, v0")
    for e in range(8):
        A("v_add_u32 v65, %d, v64" % e)
        A("v_cvt_f32_u32 v65, v65")
        round_bf16("v65", "v65")
        A("v_cvt_u32_f32 v65, v65")
        A("v_subrev_u32 v66, 0x100, v65")
        A("v_lshrrev_b32 v66, 1, v66")
        A("v_add_u32 v66, 0x100, v66")
        A("v_subrev_u32 v67, 0x200, v65")
        A("v_lshrrev_b32 v67, 2, v67")
        A("v_add_u32 v67, 0x200, v67")
        A("v_subrev_u32 v68, 0x400, v65")
        A("v_lshrrev_b32 v68, 3, v68")
        A("v_add_u32 v68, 0x300, v68")
        A("v_cmp_le_u32 vcc, 0x100, v65")
        A("s_nop 1")
        A("v_cndmask_b32 v69, v65, v66, vcc")
        A("v_cmp_le_u32 vcc, 0x200, v65")
        A("s_nop 1")
        A("v_cndmask_b32 v69, v69, v67, vcc")
        A("v_cmp_le_u32 vcc, 0x400, v65")
        A("s_nop 1")
        A("v_cndmask_b32 v69, v69, v68, vcc")
        A("v_lshlrev_b32 v69, 2, v69")
        for w in range(4):
            A("ds_read_b32 v%d, v69 offset:%d" % (70 + w, w * 4096))
        A("s_waitcnt lgkmcnt(0)")
        A("v_add_f32 v70, v70, v71")
        A("v_add_f32 v72, v72, v73")
        A("v_add_f32 v%d, v70, v72" % (80 + e))
    A("s_lshl_b32 s22, s2, 13")
    A("s_add_u32 s22, s22, %d" % WS_K)
    A("v_lshlrev_b32 v64, 5, v0")
    A("v_add_u32 v64, s22, v64")
    A("global_store_dwordx4 v64, v[80:83], s[18:19]")
    A("global_store_dwordx4 v64, v[84:87], s[18:19] offset:16")
    A("s_branch prep_end")

    A.label("prep_pack")
    A("s_load_dwordx4 s[4:7], s[0:1], %d" % KA_W1)
    A("v_readfirstlane_b32 s20, v2")
    A("s_waitcnt lgkmcnt(0)")
    A("s_sub_u32 s21, s2, %d" % N_KGEN)
    A("s_lshl_b32 s21, s21, 2")
    A("s_add_u32 s21, s21, s20")
    A("s_cmp_lt_u32 s21, 1296")
    A("s_cbranch_scc0 prep_pack_w2")
    A("s_mul_hi_u32 s22, s21, %d" % ((2**32 + 71) // 72))
    A("s_mul_i32 s23, s22, 72")
    A("s_sub_u32 s23, s21, s23")
    A("s_mul_i32 s24, s22, %d" % (32 * 9216))
    A("s_lshl_b32 s25, s23, 7")
    A("s_add_u32 s24, s24, s25")
    A("s_mov_b32 s26, 9216")
    A("s_mul_i32 s27, s23, %d" % (4 * 18))
    A("s_add_u32 s27, s27, s22")
    A("s_lshl_b32 s27, s27, 10")
    A("s_add_u32 s27, s27, %d" % WS_P1)
    A("s_mov_b32 s28, %d" % (18 * 1024))
    A("s_mov_b64 s[30:31], s[4:5]")
    A("s_branch prep_pack_go")
    A.label("prep_pack_w2")
    A("s_sub_u32 s21, s21, 1296")
    A("s_mul_hi_u32 s22, s21, %d" % ((2**32 + 8) // 9))
    A("s_mul_i32 s23, s22, 9")
    A("s_sub_u32 s23, s21, s23")
    A("s_mul_i32 s24, s22, %d" % (32 * 1152))
    A("s_lshl_b32 s25, s23, 7")
    A("s_add_u32 s24, s24, s25")
    A("s_mov_b32 s26, 1152")
    A("s_mul_i32 s27, s23, %d" % (4 * 144))
    A("s_add_u32 s27, s27, s22")
    A("s_lshl_b32 s27, s27, 10")
    A("s_add_u32 s27, s27, %d" % WS_P2)
    A("s_mov_b32 s28, %d" % (144 * 1024))
    A("s_mov_b64 s[30:31], s[6:7]")
    A.label("prep_pack_go")
    A("v_lshrrev_b32 v3, 3, v1")
    A("v_and_b32 v4, 7, v1")
    A("v_mul_lo_u32 v5, v3, s26")
    A("v_lshl_add_u32 v5, v4, 4, v5")
    A("v_add_u32 v5, s24, v5")
    A("s_lshl_b32 s29, s26, 3")
    for j in range(4):
        A("global_load_dwordx4 %s, v5, s[30:31]" % vr(16 + 4 * j, 4))
        if j < 3:
            A("v_add_u32 v5, s29, v5")
    A("v_mul_u32_u24 v6, 4608, v2")
    A("v_mul_u32_u24 v7, 144, v3")
    A("v_lshl_add_u32 v7, v4, 4, v7")
    A("v_add_u32 v7, v7, v6")
    A("s_waitcnt vmcnt(0)")
    for j in range(4):
        A("ds_write_b128 v7, %s offset:%d" % (vr(16 + 4 * j, 4), j * 8 * 144))
    A("v_and_b32 v8, 15, v1")
    A("v_lshrrev_b32 v9, 4, v1")
    A("v_mul_u32_u24 v9, %d, v9" % (8 * 144))
    A("v_lshl_add_u32 v9, v8, 1, v9")
    A("v_add_u32 v9, v9, v6")
    A("s_waitcnt lgkmcnt(0)")
    for qb in range(4):
        for i in range(8):
            A("ds_read_u16 v%d, v9 offset:%d" % (64 + 8 * qb + i, i * 144 + qb * 32))
    A("v_lshlrev_b32 v10, 4, v1")
    A("v_add_u32 v10, s27, v10")
    A("s_waitcnt lgkmcnt(0)")
    for qb in range(4):
        for k in range(4):
            A("v_lshl_or_b32 v%d, v%d, 16, v%d" % (32 + 4 * qb + k, 64 + 8 * qb + 2 * k + 1, 64 + 8 * qb + 2 * k))
    for qb in range(4):
        A("global_store_dwordx4 v10, %s, s[18:19]" % vr(32 + 4 * qb, 4))
        if qb < 3:
            A("v_add_u32 v10, s28, v10")
    A("s_branch prep_end")

    A.label("prep_ln1")
    A("s_load_dwordx2 s[4:5], s[0:1], %d" % KA_X)
    A("s_mov_b32 s20, s2")
    A("s_lshl_b32 s20, s20, 6")
    A("v_add_u32 v3, s20, v1")
    A("v_mul_u32_u24 v5, 1152, v3")
    A("v_mul_u32_u24 v6, 288, v2")
    A("v_add_u32 v5, v5, v6")
    A("s_waitcnt lgkmcnt(0)")
    XB = 16
    for j in range(18):
        A("global_load_dwordx4 %s, v5, s[4:5] offset:%d" % (vr(XB + 4 * j, 4), 16 * j))
    A("s_add_u32 s6, s18, %d" % WS_XH)
    A("s_addc_u32 s7, s19, 0")
    A("s_add_u32 s8, s18, %d" % WS_XT)
    A("s_addc_u32 s9, s19, 0")
    A("v_mov_b32 v7, 0")
    A("s_waitcnt vmcnt(0)")
    for k in range(72):
        unpack_lo("v8", "v%d" % (XB + k))
        unpack_hi("v9", "v%d" % (XB + k))
        A("v_add_f32 v7, v7, v8")
        A("v_add_f32 v7, v7, v9")
    A("v_lshlrev_b32 v10, 2, v0")
    A("v_lshlrev_b32 v11, 2, v1")
    A("ds_write_b32 v10, v7")
    A("s_waitcnt lgkmcnt(0)")
    A("s_barrier")
    for w in range(4):
        A("ds_read_b32 v%d, v11 offset:%d" % (96 + w, w * 256))
    A("s_waitcnt lgkmcnt(0)")
    A("v_add_f32 v96, v96, v97")
    A("v_add_f32 v98, v98, v99")
    A("v_add_f32 v96, v96, v98")
    A("s_mov_b32 s10, %s" % f32hex(1.0 / 576.0))
    A("v_mul_f32 v12, s10, v96")
    A("v_mov_b32 v7, 0")
    for k in range(72):
        unpack_lo("v8", "v%d" % (XB + k))
        unpack_hi("v9", "v%d" % (XB + k))
        A("v_sub_f32 v8, v8, v12")
        A("v_sub_f32 v9, v9, v12")
        A("v_fma_f32 v7, v8, v8, v7")
        A("v_fma_f32 v7, v9, v9, v7")
    A("s_barrier")
    A("ds_write_b32 v10, v7 offset:1024")
    A("s_waitcnt lgkmcnt(0)")
    A("s_barrier")
    for w in range(4):
        A("ds_read_b32 v%d, v11 offset:%d" % (96 + w, 1024 + w * 256))
    A("s_waitcnt lgkmcnt(0)")
    A("v_add_f32 v96, v96, v97")
    A("v_add_f32 v98, v98, v99")
    A("v_add_f32 v96, v96, v98")
    A("v_mul_f32 v13, s10, v96")
    round_bf16("v12", "v12")
    round_bf16("v13", "v13")
    A("v_add_f32 v13, %s, v13" % f32hex(1e-5))
    round_bf16("v13", "v13")
    A("v_sqrt_f32 v13, v13")
    A("s_nop 0")
    round_bf16("v13", "v13")
    A("v_rcp_f32 v13, v13")
    A("v_mul_u32_u24 v14, %d, v2" % (144 * 4096))
    A("v_lshl_add_u32 v14, v3, 1, v14")
    A("v_add_u32 v15, 4096, v14")
    for k in range(72):
        src = "v%d" % (XB + k)
        unpack_lo("v8", src)
        unpack_hi("v9", src)
        A("v_sub_f32 v8, v8, v12")
        A("v_sub_f32 v9, v9, v12")
        A("v_cvt_pk_bf16_f32 v8, v8, v9")
        unpack_hi("v9", "v8")
        unpack_lo("v8", "v8")
        A("v_mul_f32 v8, v8, v13")
        A("v_mul_f32 v9, v9, v13")
        A("v_cvt_pk_bf16_f32 v8, v8, v9")
        A("global_store_short v14, v8, s[6:7]")
        A("global_store_short_d16_hi v15, v8, s[6:7]")
        A("global_store_short v14, %s, s[8:9]" % src)
        A("global_store_short_d16_hi v15, %s, s[8:9]" % src)
        if k < 71:
            A("v_add_u32 v14, 8192, v14")
            A("v_add_u32 v15, 8192, v15")
    A("s_branch prep_end")

    A.label("prep_mod")
    A("s_load_dwordx4 s[4:7], s[0:1], %d" % KA_C)
    A("s_sub_u32 s20, s2, %d" % N_LN1)
    A("s_waitcnt lgkmcnt(0)")
    A("v_lshlrev_b32 v3, 1, v0")
    A("global_load_ushort v8, v3, s[4:5]")
    A("global_load_ushort v9, v3, s[4:5] offset:512")
    A("v_cmp_gt_u32 vcc, 64, v0")
    A("s_and_saveexec_b64 s[10:11], vcc")
    A("global_load_ushort v10, v3, s[4:5] offset:1024")
    A("s_mov_b64 exec, s[10:11]")
    A("s_mov_b32 s23, %s" % f32hex(-LOG2E))
    A("s_waitcnt vmcnt(0)")
    for r in (8, 9, 10):
        A("v_lshlrev_b32 v%d, 16, v%d" % (r, r))
        A("v_mul_f32 v11, s23, v%d" % r)
        A("v_exp_f32 v11, v11")
        A("s_nop 0")
        A("v_add_f32 v11, 1.0, v11")
        A("v_rcp_f32 v11, v11")
        A("s_nop 0")
        A("v_mul_f32 v%d, v%d, v11" % (r, r))
        round_bf16("v%d" % r, "v%d" % r)
    A("v_lshlrev_b32 v4, 2, v0")
    A("ds_write_b32 v4, v8")
    A("ds_write_b32 v4, v9 offset:1024")
    A("s_and_saveexec_b64 s[10:11], vcc")
    A("ds_write_b32 v4, v10 offset:2048")
    A("s_mov_b64 exec, s[10:11]")
    A("s_waitcnt lgkmcnt(0)")
    A("s_barrier")
    A("v_mul_u32_u24 v5, %d, v2" % (144 * 6912))
    A("s_lshl_b32 s21, s20, 7")
    A("v_lshl_add_u32 v5, v1, 1, v5")
    A("v_add_u32 v5, s21, v5")
    A("v_mul_u32_u24 v6, 576, v2")
    A("v_mov_b32 v7, 0")
    A("s_mov_b32 s22, 6912")
    for blk in range(18):
        for i in range(8):
            A("global_load_ushort v%d, v5, s[6:7]" % (16 + i))
            A("v_add_u32 v5, s22, v5")
        A("ds_read_b128 v[24:27], v6 offset:%d" % (blk * 32))
        A("ds_read_b128 v[28:31], v6 offset:%d" % (blk * 32 + 16))
        A("s_waitcnt vmcnt(0) lgkmcnt(0)")
        for i in range(8):
            A("v_lshlrev_b32 v%d, 16, v%d" % (16 + i, 16 + i))
            A("v_fma_f32 v7, v%d, v%d, v7" % (16 + i, 24 + i))
    A("s_barrier")
    A("ds_write_b32 v4, v7 offset:4096")
    A("s_waitcnt lgkmcnt(0)")
    A("s_barrier")
    A("v_lshlrev_b32 v11, 2, v1")
    for w in range(4):
        A("ds_read_b32 v%d, v11 offset:%d" % (96 + w, 4096 + w * 256))
    A("s_waitcnt lgkmcnt(0)")
    A("v_add_f32 v96, v96, v97")
    A("v_add_f32 v98, v98, v99")
    A("v_add_f32 v96, v96, v98")
    round_bf16("v96", "v96")
    A("s_lshl_b32 s21, s20, 8")
    A("v_add_u32 v11, s21, v11")
    A("v_cmp_gt_u32 vcc, 64, v0")
    A("s_and_saveexec_b64 s[10:11], vcc")
    A("global_store_dword v11, v96, s[18:19] offset:%d" % WS_MOD)
    A("s_mov_b64 exec, s[10:11]")
    A.label("prep_end")
    A("s_endpgm")


HB = 0
TB = 10240
CSZ = 4160
PSZ = 4 * CSZ
CONV_LDS = TB + 2 * PSZ


def gen_conv():
    kernel_begin("conv_kernel")
    A("s_cmp_ge_u32 s2, %d" % D)
    A("s_cbranch_scc1 conv_end")
    A("s_load_dwordx2 s[18:19], s[0:1], %d" % KA_WS)
    A("s_load_dwordx2 s[16:17], s[0:1], %d" % KA_DSK)
    A("v_and_b32 v1, 63, v0")
    A("v_lshrrev_b32 v2, 6, v0")
    A("s_lshl_b32 s20, s2, 2")
    A("s_waitcnt lgkmcnt(0)")
    A("s_add_u32 s4, s18, s20")
    A("s_addc_u32 s5, s19, 0")
    A("s_load_dword s10, s[4:5], %d" % (WS_MOD + 0 * 576 * 4))
    A("s_load_dword s11, s[4:5], %d" % (WS_MOD + 1 * 576 * 4))
    A("s_load_dword s12, s[4:5], %d" % (WS_MOD + 2 * 576 * 4))
    A("s_lshl_b32 s21, s2, 13")
    A("s_add_u32 s21, s21, %d" % WS_K)
    A("v_lshlrev_b32 v3, 5, v0")
    A("v_add_u32 v3, s21, v3")
    A("global_load_dwordx4 v[16:19], v3, s[18:19]")
    A("global_load_dwordx4 v[20:23], v3, s[18:19] offset:16")
    A("v_mov_b32 v24, 0")
    A("v_cmp_lt_u32 vcc, 0, v0")
    A("s_and_saveexec_b64 s[6:7], vcc")
    A("global_load_dword v24, v3, s[18:19] offset:-4")
    A("s_mov_b64 exec, s[6:7]")
    A("s_lshl_b32 s22, s2, 12")
    A("v_lshlrev_b32 v4, 4, v0")
    A("v_add_u32 v4, s22, v4")
    A("v_add_u32 v5, %d, v4" % WS_XH)
    A("global_load_dwordx4 v[28:31], v5, s[18:19]")
    A("v_add_u32 v5, %d, v4" % WS_XT)
    A("global_load_dwordx4 v[32:35], v5, s[18:19]")
    A("v_mov_b32 v6, s2")
    A("v_lshlrev_b32 v6, 1, v6")
    A("global_load_ushort v36, v6, s[16:17]")
    A("v_mov_b32 v40, 0")
    A("v_mov_b32 v41, 0")
    A("v_mov_b32 v42, 0")
    A("v_mov_b32 v43, 0")
    A("v_lshlrev_b32 v7, 4, v0")
    A("ds_write_b128 v7, v[40:43] offset:%d" % HB)
    A("v_cmp_gt_u32 vcc, 64, v0")
    A("s_and_saveexec_b64 s[6:7], vcc")
    A("ds_write_b128 v7, v[40:43] offset:%d" % (HB + 4096))
    A("s_mov_b64 exec, s[6:7]")
    A("v_cmp_gt_u32 vcc, 5, v0")
    A("s_and_saveexec_b64 s[6:7], vcc")
    for p in range(2):
        for c in range(4):
            A("ds_write_b128 v7, v[40:43] offset:%d" % (TB + p * PSZ + c * CSZ + 4080))
    A("s_mov_b64 exec, s[6:7]")
    A("s_waitcnt vmcnt(0) lgkmcnt(0)")
    A("s_barrier")
    kreg = [24] + list(range(16, 24))
    for i, r in enumerate(kreg):
        round_bf16("v%d" % (44 + i), "v%d" % r)
        A("v_sub_f32 v%d, v%d, v%d" % (53 + i, r, 44 + i))
    A("v_sub_u32 v8, 4080, v7")
    for p in range(2):
        base = 44 if p == 0 else 53
        for u in range(4):
            A("v_cvt_pk_bf16_f32 v%d, v%d, v%d" % (62 + u, base + 2 * u + 1, base + 2 * u))
            A("v_cvt_pk_bf16_f32 v%d, v%d, v%d" % (66 + u, base + 2 * u + 2, base + 2 * u + 1))
        for c in range(4):
            e = c & 1
            for u in range(4):
                imm = TB + p * PSZ + c * CSZ + 16 - 4 * u - 2 * e - 2 * c
                src = 62 + u if e == 0 else 66 + u
                A("ds_write_b32 v8, v%d offset:%d" % (src, imm))
    A("s_waitcnt lgkmcnt(0)")
    A("v_mov_b32 v9, s11")
    A("v_add_f32 v9, 1.0, v9")
    round_bf16("v9", "v9")
    for k in range(4):
        src = "v%d" % (28 + k)
        unpack_lo("v10", src)
        unpack_hi("v11", src)
        A("v_mul_f32 v10, v10, v9")
        A("v_mul_f32 v11, v11, v9")
        A("v_cvt_pk_bf16_f32 v10, v10, v11")
        unpack_hi("v11", "v10")
        unpack_lo("v10", "v10")
        A("v_add_f32 v10, s10, v10")
        A("v_add_f32 v11, s10, v11")
        A("v_cvt_pk_bf16_f32 v%d, v10, v11" % (28 + k))
    A("v_lshrrev_b32 v10, 2, v0")
    A("v_mul_u32_u24 v10, 80, v10")
    A("v_and_b32 v11, 3, v0")
    A("v_lshl_add_u32 v10, v11, 4, v10")
    A("ds_write_b128 v10, v[28:31] offset:%d" % (HB + 64 * 80))
    A("s_waitcnt lgkmcnt(0)")
    A("s_barrier")
    A("v_and_b32 v12, 31, v1")
    A("v_lshrrev_b32 v13, 5, v1")
    A("v_and_b32 v14, 1, v2")
    A("v_lshrrev_b32 v15, 1, v2")
    A("v_and_b32 v16, 3, v12")
    A("v_sub_u32 v16, 4, v16")
    A("v_and_b32 v16, 3, v16")
    A("v_mul_u32_u24 v17, %d, v14" % PSZ)
    A("v_mul_u32_u24 v18, %d, v16" % (CSZ - 2))
    A("v_add_u32 v17, v17, v18")
    A("v_lshlrev_b32 v18, 4, v13")
    A("v_add_u32 v17, v17, v18")
    A("v_lshlrev_b32 v18, 1, v12")
    A("v_sub_u32 v17, v17, v18")
    A("v_lshlrev_b32 v18, 6, v15")
    A("v_sub_u32 v17, v17, v18")
    A("v_add_u32 v17, %d, v17" % (TB + 4096 - 128 * 31))
    A("v_sub_u32 v19, v12, v15")
    A("v_add_u32 v19, 2, v19")
    A("v_mul_u32_u24 v19, 80, v19")
    A("v_lshlrev_b32 v18, 4, v13")
    A("v_add_u32 v19, v19, v18")
    if HB:
        A("v_add_u32 v19, %d, v19" % HB)
    for r in range(32):
        A("v_accvgpr_write_b32 a%d, 0" % r)
    steps = [(i, ks) for i in range(32) for ks in range(2)]

    def issue(idx, buf):
        i, ks = steps[idx]
        immA = 128 * (31 - i) + 32 * ks
        A("ds_read_b64 %s, v17 offset:%d" % (vr(64 + 4 * buf, 2), immA))
        A("ds_read_b64 %s, v17 offset:%d" % (vr(66 + 4 * buf, 2), immA + 8))
        A("ds_read_b128 %s, v19 offset:%d" % (vr(72 + 4 * buf, 4), (2 * (31 - i) + 32) * 80 + 32 * ks))
        n = 3
        if i < 16:
            A("ds_read_b128 %s, v19 offset:%d" % (vr(80 + 4 * buf, 4), (2 * (31 - i)) * 80 + 32 * ks))
            n = 4
        return n
    issue(0, 0)
    for idx in range(len(steps)):
        buf = idx & 1
        nnext = 0
        if idx + 1 < len(steps):
            nnext = issue(idx + 1, buf ^ 1)
        A("s_waitcnt lgkmcnt(%d)" % nnext)
        i, ks = steps[idx]
        A("v_mfma_f32_32x32x16_bf16 a[16:31], %s, %s, a[16:31]" % (vr(64 + 4 * buf, 4), vr(72 + 4 * buf, 4)))
        if i < 16:
            A("v_mfma_f32_32x32x16_bf16 a[0:15], %s, %s, a[0:15]" % (vr(64 + 4 * buf, 4), vr(80 + 4 * buf, 4)))
    nop(16)
    A("s_barrier")
    A("v_lshlrev_b32 v20, 13, v2")
    A("v_lshlrev_b32 v21, 7, v12")
    A("v_lshlrev_b32 v22, 4, v13")
    A("v_add3_u32 v20, v20, v21, v22")
    for tcol in range(2):
        for g in range(4):
            for r in range(4):
                A("v_accvgpr_read_b32 v%d, a%d" % (64 + r, 16 * tcol + 4 * g + r))
            A("ds_write_b128 v20, v[64:67] offset:%d" % (4096 * tcol + 32 * g))
    A("s_waitcnt lgkmcnt(0)")
    A("s_barrier")
    A("v_lshlrev_b32 v21, 5, v0")
    for w in range(4):
        A("ds_read_b128 %s, v21 offset:%d" % (vr(64 + 8 * w, 4), w * 8192))
        A("ds_read_b128 %s, v21 offset:%d" % (vr(68 + 8 * w, 4), w * 8192 + 16))
    A("v_lshlrev_b32 v36, 16, v36")
    A("s_waitcnt lgkmcnt(0) vmcnt(0)")
    for e in range(8):
        A("v_add_f32 v%d, v%d, v%d" % (64 + e, 64 + e, 72 + e))
        A("v_add_f32 v%d, v%d, v%d" % (80 + e, 80 + e, 88 + e))
        A("v_add_f32 v%d, v%d, v%d" % (64 + e, 64 + e, 80 + e))
    for k in range(4):
        y0, y1 = 64 + 2 * k, 65 + 2 * k
        A("v_cvt_pk_bf16_f32 v10, v%d, v%d" % (y0, y1))
        unpack_lo("v11", "v%d" % (28 + k))
        unpack_hi("v12", "v%d" % (28 + k))
        A("v_mul_f32 v11, v11, v36")
        A("v_mul_f32 v12, v12, v36")
        A("v_cvt_pk_bf16_f32 v11, v11, v12")
        unpack_lo("v13", "v10")
        unpack_hi("v14", "v10")
        unpack_lo("v15", "v11")
        unpack_hi("v16", "v11")
        A("v_add_f32 v13, v13, v15")
        A("v_add_f32 v14, v14, v16")
        A("v_cvt_pk_bf16_f32 v13, v13, v14")
        unpack_hi("v14", "v13")
        unpack_lo("v13", "v13")
        A("v_mul_f32 v13, s12, v13")
        A("v_mul_f32 v14, s12, v14")
        A("v_cvt_pk_bf16_f32 v13, v13, v14")
        unpack_hi("v14", "v13")
        unpack_lo("v13", "v13")
        unpack_lo("v15", "v%d" % (32 + k))
        unpack_hi("v16", "v%d" % (32 + k))
        A("v_add_f32 v13, v13, v15")
        A("v_add_f32 v14, v14, v16")
        A("v_cvt_pk_bf16_f32 v%d, v13, v14" % (40 + k))
    A("v_add_u32 v5, %d, v4" % WS_X1T)
    A("global_store_dwordx4 v5, v[40:43], s[18:19]")
    A.label("conv_end")
    A("s_endpgm")


LN2_WGS = 32


def gen_ln2():
    kernel_begin("ln2_kernel")
    A("s_cmp_ge_u32 s2, %d" % LN2_WGS)
    A("s_cbranch_scc1 ln2_end")
    A("s_load_dwordx2 s[18:19], s[0:1], %d" % KA_WS)
    A("v_and_b32 v1, 63, v0")
    A("v_lshrrev_b32 v2, 6, v0")
    A("s_lshl_b32 s22, s2, 6")
    A("v_add_u32 v3, s22, v1")
    A("v_mul_u32_u24 v4, %d, v2" % (36 * 4096))
    A("v_lshl_add_u32 v4, v3, 1, v4")
    A("v_add_u32 v4, %d, v4" % WS_X1T)
    A("v_mul_u32_u24 v14, 144, v2")
    A("v_add_u32 v15, %d, v14" % (WS_MOD + 4 * 576 * 4))
    A("v_add_u32 v16, %d, v14" % (WS_MOD + 3 * 576 * 4))
    A("s_waitcnt lgkmcnt(0)")
    XB = 20
    for k in range(36):
        A("global_load_ushort v%d, v4, s[18:19]" % (XB + k))
        if k < 35:
            A("v_add_u32 v4, 4096, v4")
    for q in range(9):
        A("global_load_dwordx4 %s, v15, s[18:19] offset:%d" % (vr(56 + 4 * q, 4), 16 * q))
        A("global_load_dwordx4 %s, v16, s[18:19] offset:%d" % (vr(92 + 4 * q, 4), 16 * q))
    A("s_waitcnt vmcnt(18)")
    A("v_mov_b32 v7, 0")
    for k in range(36):
        A("v_lshlrev_b32 v%d, 16, v%d" % (XB + k, XB + k))
        A("v_add_f32 v7, v7, v%d" % (XB + k))
    A("v_lshlrev_b32 v10, 2, v0")
    A("v_lshlrev_b32 v11, 2, v1")
    A("ds_write_b32 v10, v7")
    A("s_waitcnt lgkmcnt(0)")
    A("s_barrier")
    A("v_mov_b32 v8, 0")
    for w in range(16):
        A("ds_read_b32 v9, v11 offset:%d" % (w * 256))
        A("s_waitcnt lgkmcnt(0)")
        A("v_add_f32 v8, v8, v9")
    A("s_mov_b32 s10, %s" % f32hex(1.0 / 576.0))
    A("v_mul_f32 v12, s10, v8")
    A("v_mov_b32 v7, 0")
    for k in range(36):
        A("v_sub_f32 v8, v%d, v12" % (XB + k))
        A("v_fma_f32 v7, v8, v8, v7")
    A("ds_write_b32 v10, v7 offset:4096")
    A("s_waitcnt lgkmcnt(0)")
    A("s_barrier")
    A("v_mov_b32 v8, 0")
    for w in range(16):
        A("ds_read_b32 v9, v11 offset:%d" % (4096 + w * 256))
        A("s_waitcnt lgkmcnt(0)")
        A("v_add_f32 v8, v8, v9")
    A("v_mul_f32 v13, s10, v8")
    round_bf16("v12", "v12")
    round_bf16("v13", "v13")
    A("v_add_f32 v13, %s, v13" % f32hex(1e-5))
    round_bf16("v13", "v13")
    A("v_sqrt_f32 v13, v13")
    A("s_nop 0")
    round_bf16("v13", "v13")
    A("v_rcp_f32 v13, v13")
    A("s_waitcnt vmcnt(0)")
    A("v_mul_u32_u24 v17, 1152, v3")
    A("v_mul_u32_u24 v18, 72, v2")
    A("v_add_u32 v17, v17, v18")
    A("v_add_u32 v18, %d, v17" % WS_X1R)
    A("v_add_u32 v17, %d, v17" % WS_H2)
    for p in range(18):
        k0, k1 = XB + 2 * p, XB + 2 * p + 1
        c0, c1 = 56 + 2 * p, 57 + 2 * p
        b0, b1 = 92 + 2 * p, 93 + 2 * p
        A("v_add_f32 v5, 1.0, v%d" % c0)
        A("v_add_f32 v6, 1.0, v%d" % c1)
        A("v_cvt_pk_bf16_f32 v5, v5, v6")
        unpack_hi("v6", "v5")
        unpack_lo("v5", "v5")
        A("v_sub_f32 v8, v%d, v12" % k0)
        A("v_sub_f32 v9, v%d, v12" % k1)
        A("v_cvt_pk_bf16_f32 v8, v8, v9")
        unpack_hi("v9", "v8")
        unpack_lo("v8", "v8")
        A("v_mul_f32 v8, v8, v13")
        A("v_mul_f32 v9, v9, v13")
        A("v_cvt_pk_bf16_f32 v8, v8, v9")
        unpack_hi("v9", "v8")
        unpack_lo("v8", "v8")
        A("v_mul_f32 v8, v8, v5")
        A("v_mul_f32 v9, v9, v6")
        A("v_cvt_pk_bf16_f32 v8, v8, v9")
        unpack_hi("v9", "v8")
        unpack_lo("v8", "v8")
        A("v_add_f32 v8, v8, v%d" % b0)
        A("v_add_f32 v9, v9, v%d" % b1)
        A("v_cvt_pk_bf16_f32 v%d, v8, v9" % c0)
        A("v_cvt_pk_bf16_f32 v%d, v%d, v%d" % (c1, k0, k1))
    A("v_mul_u32_u24 v17, 1168, v1")
    A("v_mul_u32_u24 v18, 72, v2")
    A("v_add_u32 v17, v17, v18")
    A("v_add_u32 v17, 8192, v17")
    A("v_add_u32 v18, 74752, v17")
    for p in range(18):
        A("ds_write_b32 v17, v%d offset:%d" % (56 + 2 * p, 4 * p))
        A("ds_write_b32 v18, v%d offset:%d" % (57 + 2 * p, 4 * p))
    A("s_waitcnt lgkmcnt(0)")
    A("s_barrier")
    A("s_mov_b32 s25, %d" % ((2**32 + 71) // 72))
    A("s_mul_i32 s24, s2, %d" % (64 * 1152))
    for j in range(5):
        A("v_add_u32 v5, %d, v0" % (1024 * j))
        if j == 4:
            A("v_cmp_gt_u32 vcc, 4608, v5")
            A("s_and_saveexec_b64 s[6:7], vcc")
        A("v_mul_hi_u32 v6, v5, s25")
        A("v_mul_u32_u24 v7, 72, v6")
        A("v_sub_u32 v7, v5, v7")
        A("v_mul_u32_u24 v6, 1168, v6")
        A("v_lshl_add_u32 v6, v7, 4, v6")
        A("v_add_u32 v7, 74752, v6")
        A("ds_read_b128 v[20:23], v6 offset:8192")
        A("ds_read_b128 v[24:27], v7 offset:8192")
        A("v_lshlrev_b32 v8, 4, v5")
        A("v_add_u32 v8, s24, v8")
        A("v_add_u32 v9, %d, v8" % WS_X1R)
        A("v_add_u32 v8, %d, v8" % WS_H2)
        A("s_waitcnt lgkmcnt(0)")
        A("global_store_dwordx4 v8, v[20:23], s[18:19]")
        A("global_store_dwordx4 v9, v[24:27], s[18:19]")
        if j == 4:
            A("s_mov_b64 exec, s[6:7]")
    A.label("ln2_end")
    A("s_endpgm")

RS = 1168
H2B = 0
H1B = 64 * RS
MLP_LDS = 2 * 64 * RS + 2048


def gen_mlp():
    kernel_begin("mlp_kernel")
    A("s_cmp_ge_u32 s2, 256")
    A("s_cbranch_scc1 mlp_end")
    A("s_load_dwordx2 s[18:19], s[0:1], %d" % KA_WS)
    A("v_and_b32 v1, 63, v0")
    A("v_lshrrev_b32 v2, 6, v0")
    A("s_lshr_b32 s20, s2, 3")
    A("s_and_b32 s21, s2, 7")
    A("s_lshl_b32 s22, s20, 6")
    A("v_readfirstlane_b32 s23, v2")
    A("s_waitcnt lgkmcnt(0)")
    A("s_mul_i32 s24, s20, %d" % (64 * 1152))
    A("s_add_u32 s24, s24, %d" % WS_H2)
    A("v_lshlrev_b32 v4, 4, v0")
    A("v_add_u32 v4, s24, v4")
    for j in range(18):
        A("global_load_dwordx4 %s, v4, s[18:19]" % vr(24 + 4 * j, 4))
        if j < 17:
            A("v_add_u32 v4, 4096, v4")
    A("s_mov_b32 s25, %d" % ((2**32 + 71) // 72))
    for j in range(18):
        A("v_add_u32 v5, %d, v0" % (256 * j))
        A("v_mul_hi_u32 v6, v5, s25")
        A("v_mul_u32_u24 v7, 72, v6")
        A("v_sub_u32 v7, v5, v7")
        A("v_mul_u32_u24 v6, %d, v6" % RS)
        A("v_lshl_add_u32 v%d, v7, 4, v6" % (100 + j))
    A("s_waitcnt vmcnt(0)")
    for j in range(18):
        A("ds_write_b128 v%d, %s offset:%d" % (100 + j, vr(24 + 4 * j, 4), H2B))
    A("s_waitcnt lgkmcnt(0)")
    A("s_barrier")

    A("v_and_b32 v16, 15, v1")
    A("v_lshrrev_b32 v17, 4, v1")
    A("v_mul_u32_u24 v18, %d, v16" % RS)
    A("v_lshl_add_u32 v18, v17, 4, v18")
    A("v_lshlrev_b32 v19, 4, v1")

    AB = [24, 60, 96]
    BB = [132, 148]
    AD = 164

    def gemm(lds_base, a_sbase, a_blk_stride_ks, nks):
        for r in range(144):
            A("v_accvgpr_write_b32 a%d, 0" % r)
        A("v_add_u32 v22, %s, v19" % a_sbase)
        A("v_add_u32 v23, %d, v18" % lds_base)
        for j in range(9):
            A("v_add_u32 v%d, %d, v22" % (AD + j, j * a_blk_stride_ks))

        def issueA(ks):
            buf = ks % 3
            for j in range(9):
                A("global_load_dwordx4 %s, v%d, s[18:19] offset:%d" % (vr(AB[buf] + 4 * j, 4), AD + j, (ks % 4) * 1024))
            if ks % 4 == 3:
                for j in range(9):
                    A("v_add_u32 v%d, 4096, v%d" % (AD + j, AD + j))

        def issueB(ks):
            buf = ks & 1
            for nt in range(4):
                A("ds_read_b128 %s, v23 offset:%d" % (vr(BB[buf] + 4 * nt, 4), nt * 16 * RS + ks * 64))
        issueA(0)
        issueA(1)
        issueB(0)
        for ks in range(nks):
            nA = 0
            if ks + 2 < nks:
                issueA(ks + 2)
            nA = 9 * min(2, nks - 1 - ks)
            nB = 0
            if ks + 1 < nks:
                issueB(ks + 1)
                nB = 4
            A("s_waitcnt vmcnt(%d) lgkmcnt(%d)" % (nA, nB))
            for j in range(9):
                for nt in range(4):
                    acc = (j * 4 + nt) * 4
                    A("v_mfma_f32_16x16x32_bf16 %s, %s, %s, %s" % (ar_(acc, 4), vr(AB[ks % 3] + 4 * j, 4), vr(BB[ks & 1] + 4 * nt, 4), ar_(acc, 4)))
        nop(16)

    A("s_mul_i32 s24, s21, 36")
    A("s_mul_i32 s25, s23, 9")
    A("s_add_u32 s24, s24, s25")
    A("s_mul_i32 s24, s24, %d" % (18 * 1024))
    A("s_add_u32 s24, s24, %d" % WS_P1)
    if 'nog1' not in FLAGS:
        gemm(H2B, "s24", 18 * 1024, 18)
    A("v_mul_u32_u24 v20, %d, v16" % RS)
    A("v_lshl_add_u32 v20, v17, 3, v20")
    A("v_mul_u32_u24 v21, 288, v2")
    A("v_add_u32 v20, v20, v21")
    A("v_add_u32 v20, %d, v20" % H1B)
    A("s_mov_b32 s11, %s" % f32hex(-LOG2E))
    for j in range(9 if 'noe1' not in FLAGS else 0):
        for nt in range(4):
            acc = (j * 4 + nt) * 4
            for r in range(4):
                A("v_accvgpr_read_b32 v%d, a%d" % (24 + r, acc + r))
            A("v_cvt_pk_bf16_f32 v24, v24, v25")
            A("v_cvt_pk_bf16_f32 v26, v26, v27")
            unpack_hi("v25", "v24")
            unpack_lo("v24", "v24")
            unpack_hi("v27", "v26")
            unpack_lo("v26", "v26")
            for r in range(4):
                A("v_mul_f32 v%d, s11, v%d" % (28 + r, 24 + r))
            for r in range(4):
                A("v_exp_f32 v%d, v%d" % (28 + r, 28 + r))
            A("s_nop 0")
            for r in range(4):
                A("v_add_f32 v%d, 1.0, v%d" % (28 + r, 28 + r))
            for r in range(4):
                A("v_rcp_f32 v%d, v%d" % (28 + r, 28 + r))
            A("s_nop 0")
            for r in range(4):
                A("v_mul_f32 v%d, v%d, v%d" % (24 + r, 24 + r, 28 + r))
            A("v_cvt_pk_bf16_f32 v24, v24, v25")
            A("v_cvt_pk_bf16_f32 v25, v26, v27")
            A("ds_write_b64 v20, v[24:25] offset:%d" % (nt * 16 * RS + j * 32))
    A("s_waitcnt lgkmcnt(0)")
    A("s_barrier")
    A("s_mul_i32 s24, s23, %d" % (9 * 144))
    A("s_mul_i32 s25, s21, 18")
    A("s_add_u32 s24, s24, s25")
    A("s_lshl_b32 s24, s24, 10")
    A("s_add_u32 s24, s24, %d" % WS_P2)
    if 'nog2' not in FLAGS:
        gemm(H1B, "s24", 144 * 1024, 18)
    A("v_add_u32 v20, s22, v16")
    A("v_mul_u32_u24 v20, 2304, v20")
    A("v_lshl_add_u32 v20, v17, 4, v20")
    A("v_mul_u32_u24 v21, 576, v2")
    A("v_add_u32 v20, v20, v21")
    A("s_mul_i32 s24, s21, %d" % (L * D * 4))
    A("s_add_u32 s24, s24, %d" % WS_PART)
    A("v_add_u32 v20, s24, v20")
    for nt in range(4):
        for j in range(9):
            acc = (j * 4 + nt) * 4
            A("global_store_dwordx4 v20, %s, s[18:19] offset:%d" % (ar_(acc, 4), j * 64))
        if nt < 3:
            A("v_add_u32 v20, %d, v20" % (16 * 2304))
    A.label("mlp_end")
    A("s_endpgm")


RED_WGS = L * D // 8 // 256


def gen_reduce():
    kernel_begin("reduce_kernel")
    A("s_cmp_ge_u32 s2, %d" % RED_WGS)
    A("s_cbranch_scc1 red_end")
    A("s_load_dwordx2 s[18:19], s[0:1], %d" % KA_WS)
    A("s_load_dwordx2 s[16:17], s[0:1], %d" % KA_OUT)
    A("s_lshl_b32 s20, s2, 8")
    A("v_add_u32 v1, s20, v0")
    A("v_lshlrev_b32 v2, 5, v1")
    A("v_lshlrev_b32 v3, 4, v1")
    A("s_mov_b32 s21, %d" % ((2**32 + 71) // 72))
    A("v_mul_hi_u32 v4, v1, s21")
    A("v_mul_u32_u24 v5, 72, v4")
    A("v_sub_u32 v5, v1, v5")
    A("v_lshlrev_b32 v5, 5, v5")
    A("v_add_u32 v5, %d, v5" % (WS_MOD + 5 * 576 * 4))
    A("s_waitcnt lgkmcnt(0)")
    A("global_load_dwordx4 v[8:11], v5, s[18:19]")
    A("global_load_dwordx4 v[12:15], v5, s[18:19] offset:16")
    A("v_add_u32 v6, %d, v3" % WS_X1R)
    A("global_load_dwordx4 v[16:19], v6, s[18:19]")
    A("v_add_u32 v7, %d, v2" % WS_PART)
    for s in range(NSPLIT):
        A("global_load_dwordx4 %s, v7, s[18:19]" % vr(32 + 8 * s, 4))
        A("global_load_dwordx4 %s, v7, s[18:19] offset:16" % vr(36 + 8 * s, 4))
        if s < NSPLIT - 1:
            A("v_add_u32 v7, %d, v7" % (L * D * 4))
    A("s_waitcnt vmcnt(0)")
    for s in range(1, NSPLIT):
        for e in range(8):
            A("v_add_f32 v%d, v%d, v%d" % (32 + e, 32 + e, 32 + 8 * s + e))
    for k in range(4):
        A("v_cvt_pk_bf16_f32 v20, v%d, v%d" % (32 + 2 * k, 33 + 2 * k))
        unpack_hi("v21", "v20")
        unpack_lo("v20", "v20")
        A("v_mul_f32 v20, v20, v%d" % (8 + 2 * k))
        A("v_mul_f32 v21, v21, v%d" % (9 + 2 * k))
        A("v_cvt_pk_bf16_f32 v20, v20, v21")
        unpack_hi("v21", "v20")
        unpack_lo("v20", "v20")
        unpack_lo("v22", "v%d" % (16 + k))
        unpack_hi("v23", "v%d" % (16 + k))
        A("v_add_f32 v20, v20, v22")
        A("v_add_f32 v21, v21, v23")
        A("v_cvt_pk_bf16_f32 v%d, v20, v21" % (24 + k))
    A("global_store_dwordx4 v3, v[24:27], s[16:17]")
    A.label("red_end")
    A("s_endpgm")


def main():
    hdr = open(OUT + ".ref").read().split("; @launch")[0]
    out = [hdr]
    out.append("; @launch kernel=prep_kernel grid=(%d,1,1) block=(256,1,1) lds=%d\n" % (PREP_WGS, PREP_LDS))
    out.append("; @launch kernel=conv_kernel grid=(%d,1,1) block=(256,1,1) lds=%d\n" % (D, CONV_LDS))
    out.append("; @launch kernel=ln2_kernel grid=(%d,1,1) block=(1024,1,1) lds=157696\n" % LN2_WGS)
    out.append("; @launch kernel=mlp_kernel grid=(256,1,1) block=(256,1,1) lds=%d\n" % MLP_LDS)
    out.append("; @launch kernel=reduce_kernel grid=(%d,1,1) block=(256,1,1) lds=0\n" % RED_WGS)
    out.append('.amdgcn_target "amdgcn-amd-amdhsa--gfx950"\n')
    gen_prep()
    gen_conv()
    gen_ln2()
    gen_mlp()
    gen_reduce()
    out.append(A.text())
    out.append(kernel_desc("prep_kernel", 144))
    out.append(kernel_desc("conv_kernel", 96, agpr=32))
    out.append(kernel_desc("ln2_kernel", 128))
    out.append(kernel_desc("mlp_kernel", 176, agpr=144))
    out.append(kernel_desc("reduce_kernel", 100))
    open(OUT, "w").write("".join(out))
    print("wrote", OUT, "MLP_LDS", MLP_LDS, "CONV_LDS", CONV_LDS)


if __name__ == "__main__":
    main()
```
